```python
import torch

def _softmax(x, axis=-1):
    return torch.softmax(x, dim=axis)
def _gelu(x):
    return torch.nn.functional.gelu(x, approximate="tanh")
def _silu(x):
    return torch.nn.functional.silu(x)
def _sigmoid(x):
    return torch.sigmoid(x)
def _layernorm(x, axis=-1, eps=1e-5):
    m = x.mean(dim=axis, keepdim=True)
    v = x.var(dim=axis, keepdim=True, unbiased=False)
    return (x - m) / torch.sqrt(v + eps)
def _scatter_add(tgt, idx, src, axis=0):
    return tgt.clone().index_add_(axis, idx, src)
def _segment_sum(src, seg, n):
    out = torch.zeros((n,) + src.shape[1:], dtype=src.dtype)
    return out.index_add_(0, seg, src)
def _pad(x, pw):
    flat = tuple(v for pair in reversed(pw) for v in pair)
    return torch.nn.functional.pad(x, flat)

kernel_name = 'standalone__geglu_ffn__prompt'

def setup_inputs():

    _w = (lambda a: (lambda t: t.to(torch.bfloat16) if t.is_floating_point() else t)(torch.as_tensor(a)))
    B, S, D, F = 1, 2048, 640, 1728
    return {
        "x": _w((lambda *s: torch.randn(*s, dtype=torch.bfloat16) * 0.05)(B, S, D)),
        "w_gate": _w((lambda *s: torch.randn(*s, dtype=torch.bfloat16) * 0.05)(D, F)),
        "w_up": _w((lambda *s: torch.randn(*s, dtype=torch.bfloat16) * 0.05)(D, F)),
        "w_down": _w((lambda *s: torch.randn(*s, dtype=torch.bfloat16) * 0.05)(F, D)),
    }

def reference(x, w_gate, w_up, w_down):
    return (_gelu(x @ w_gate) * (x @ w_up)) @ w_down
```

```python
import sys

M, D, F = 2048, 640, 1728
KB2 = F // 32
H_BYTES = M * F * 2
WDT_OFF = 8 << 20
WDT_BYTES = F * D * 2
WS_USED = WDT_OFF + WDT_BYTES

out = []
def e(s=""):
    out.append(s)

def interleave(main, others, lead=0):
    res = []
    others = list(others)
    res += others[:lead]
    others = others[lead:]
    n, k = len(main), len(others)
    if n == 0:
        return res + others
    j = 0
    for i, m in enumerate(main):
        res.append(m)
        tgt = ((i + 1) * k) // n
        while j < tgt:
            res.append(others[j]); j += 1
    res += others[j:]
    return res

STAGE = 49152
NST = D // 64

def k1():
    ACC = 64
    def acc(mat, tt, a): return ACC + ((mat * 2 + tt) * 4 + a) * 4
    FR = {0: 128, 1: 160}
    def xf(s, a): return FR[s] + a * 4
    def wf(s, mat, tt): return FR[s] + 16 + (mat * 2 + tt) * 4
    vXe, vXo, vWe, vWo = 2, 3, 4, 5
    def vRX(b, s): return 8 + b * 4 + s
    def vRW(b, tt): return 8 + b * 4 + 2 + tt
    vLane = 1

    e("standalone__geglu_ffn__prompt_k1_kernel:")
    e("  s_cmp_ge_u32 s2, 256")
    e("  s_cbranch_scc1 L1_end")
    e("  s_load_dwordx8 s[4:11], s[0:1], 0")
    e("  s_load_dwordx2 s[12:13], s[0:1], 48")
    e("  v_lshrrev_b32 v20, 6, v0")
    e("  v_and_b32 v1, 63, v0")
    e("  s_and_b32 s14, s2, 7")
    e("  s_lshr_b32 s15, s2, 3")
    e("  v_readfirstlane_b32 s32, v20")
    e("  s_lshr_b32 s16, s14, 1")
    e("  s_cmp_eq_u32 s16, 3")
    e("  s_cselect_b32 s17, 24, 28")
    e("  s_waitcnt lgkmcnt(0)")
    e("  s_mov_b32 s28, s12")
    e("  s_and_b32 s29, s13, 0xffff")
    e(f"  s_mov_b32 s30, {WS_USED}")
    e("  s_mov_b32 s31, 0x00020000")
    e("  s_cmp_ge_u32 s15, s17")
    e("  s_cbranch_scc1 L1_transposer")
    e("  s_and_b32 s18, s14, 1")
    e("  s_lshl_b32 s18, s18, 2")
    e("  s_and_b32 s19, s15, 3")
    e("  s_add_u32 s18, s18, s19")
    e("  s_mul_i32 s19, s16, 7")
    e("  s_lshr_b32 s33, s15, 2")
    e("  s_add_u32 s19, s19, s33")
    e("  s_mov_b32 s20, s4")
    e("  s_and_b32 s21, s5, 0xffff")
    e(f"  s_mov_b32 s22, {M * D * 2}")
    e("  s_mov_b32 s23, 0x00020000")
    e("  s_and_b32 s33, s32, 1")
    e("  s_cmp_eq_u32 s33, 0")
    e("  s_cselect_b32 s24, s6, s8")
    e("  s_cselect_b32 s25, s7, s9")
    e("  s_and_b32 s25, s25, 0xffff")
    e(f"  s_mov_b32 s26, {D * F * 2}")
    e("  s_mov_b32 s27, 0x00020000")
    e("  s_mul_i32 s34, s18, 327680")
    e("  s_lshr_b32 s35, s32, 1")
    e("  s_mul_i32 s36, s35, 55296")
    e("  s_lshl_b32 s37, s19, 7")
    e("  s_add_u32 s36, s36, s37")
    e("  s_lshl_b32 s38, s32, 12")
    e("  s_lshl_b32 s39, s33, 13")
    e("  s_lshl_b32 s40, s35, 11")
    e("  s_add_u32 s39, s39, s40")
    e("  s_add_u32 s39, s39, 32768")
    e("  v_lshrrev_b32 v20, 3, v1")
    e("  v_and_b32 v21, 7, v1")
    e("  v_lshrrev_b32 v22, 4, v1")
    e("  v_xor_b32 v23, v21, v22")
    e("  v_lshlrev_b32 v23, 4, v23")
    e("  v_mul_u32_u24 v24, 1280, v20")
    e("  s_mul_i32 s40, s32, 40960")
    e("  v_add3_u32 v2, v24, v23, s40")
    e("  v_xor_b32 v3, 64, v2")
    e("  v_and_b32 v23, 1, v22")
    e("  v_lshlrev_b32 v23, 1, v23")
    e("  v_xor_b32 v23, v21, v23")
    e("  v_lshlrev_b32 v23, 4, v23")
    e("  v_mul_u32_u24 v24, 3456, v20")
    e("  v_add_u32 v4, v24, v23")
    e("  v_xor_b32 v5, 64, v4")

    def dma(st):
        b = st % 3
        L = []
        for q in range(4):
            L.append(f"  s_add_u32 m0, s38, {b * STAGE + q * 1024}")
            L.append(f"  s_add_u32 s{42 + (q & 1)}, s34, {st * 128 + q * 10240}")
            L.append(f"  buffer_load_dwordx4 v{vXo if q & 1 else vXe}, s[20:23], s{42 + (q & 1)} offen lds")
        for o in range(2):
            L.append(f"  s_add_u32 m0, s39, {b * STAGE + o * 1024}")
            L.append(f"  s_add_u32 s{42 + o}, s36, {(st * 64 + 8 * o) * 3456}")
            L.append(f"  buffer_load_dwordx4 v{vWo if o else vWe}, s[24:27], s{42 + o} offen lds")
        return L

    for l in dma(0): e(l)
    for l in dma(1): e(l)

    e("  s_and_b32 s40, s32, 3")
    e("  s_lshr_b32 s41, s32, 2")
    e("  v_and_b32 v20, 15, v1")
    e("  v_lshrrev_b32 v21, 4, v1")
    e("  v_lshrrev_b32 v22, 1, v20")
    e("  v_xor_b32 v22, v21, v22")
    e("  v_lshlrev_b32 v22, 4, v22")
    e("  v_lshlrev_b32 v23, 7, v20")
    e("  s_lshl_b32 s42, s40, 13")
    e(f"  v_add3_u32 v{vRX(0,0)}, v22, v23, s42")
    e(f"  v_xor_b32 v{vRX(0,1)}, 64, v{vRX(0,0)}")
    e("  v_bfe_u32 v22, v1, 2, 2")
    e("  v_and_b32 v23, 3, v1")
    e("  v_lshrrev_b32 v24, 1, v22")
    e("  v_and_b32 v25, 1, v21")
    e("  v_lshl_add_u32 v24, v25, 1, v24")
    e("  v_lshl_add_u32 v25, v21, 3, v22")
    e("  v_lshlrev_b32 v25, 7, v25")
    e("  v_lshl_add_u32 v25, v23, 3, v25")
    e("  v_add_u32 v25, 32768, v25")
    e("  s_lshl_b32 s42, s41, 1")
    for tt in range(2):
        e(f"  s_add_u32 s43, s42, {tt}")
        e("  v_xor_b32 v26, s43, v24")
        e(f"  v_lshl_add_u32 v{vRW(0,tt)}, v26, 5, v25")
    for b in (1, 2):
        for s in range(2):
            e(f"  v_add_u32 v{vRX(b,s)}, {b * STAGE}, v{vRX(0,s)}")
            e(f"  v_add_u32 v{vRW(b,s)}, {b * STAGE}, v{vRW(0,s)}")
    for i in range(64):
        e(f"  v_mov_b32 v{ACC + i}, 0")

    def reads(st, s):
        b = st % 3
        L = []
        for mat in range(2):
            for tt in range(2):
                for h in range(2):
                    r = wf(s, mat, tt) + 2 * h
                    L.append(f"  ds_read_b64_tr_b16 v[{r}:{r+1}], v{vRW(b,tt)} offset:{mat * 8192 + s * 4096 + h * 512}")
        for a in range(4):
            r = xf(s, a)
            L.append(f"  ds_read_b128 v[{r}:{r+3}], v{vRX(b,s)} offset:{a * 2048}")
        return L

    def mfmas(s):
        L = []
        for a in range(4):
            for mat in range(2):
                for tt in range(2):
                    c = acc(mat, tt, a)
                    w = wf(s, mat, tt); x = xf(s, a)
                    L.append(f"  v_mfma_f32_16x16x32_bf16 v[{c}:{c+3}], v[{w}:{w+3}], v[{x}:{x+3}], v[{c}:{c+3}]")
        return L

    e("  s_waitcnt vmcnt(6)")
    e("  s_barrier")
    for st in range(NST):
        e(f"  ; ---- stage {st}")
        oth = reads(st, 0)
        if st + 2 < NST:
            oth += dma(st + 2)
        if st > 0:
            for l in interleave(mfmas(1), oth, lead=4): e(l)
        else:
            for l in oth: e(l)
        e("  s_waitcnt lgkmcnt(0)")
        for l in interleave(mfmas(0), reads(st, 1), lead=0): e(l)
        if st + 1 < NST:
            e(f"  s_waitcnt vmcnt({6 if st + 2 < NST else 0}) lgkmcnt(0)")
            e("  s_barrier")
        else:
            e("  s_waitcnt lgkmcnt(0)")
    for l in mfmas(1): e(l)
    e("  s_lshl_b32 s42, s18, 4")
    e("  s_lshl_b32 s43, s40, 2")
    e("  s_add_u32 s42, s42, s43")
    e(f"  s_mul_i32 s42, s42, {KB2}")
    e("  s_lshl_b32 s43, s19, 1")
    e("  s_add_u32 s42, s42, s43")
    e("  s_add_u32 s42, s42, s41")
    e("  s_lshl_b32 s42, s42, 10")
    e("  v_lshlrev_b32 v20, 4, v1")
    import math
    c0 = -2.0 * math.sqrt(2.0 / math.pi) * math.log2(math.e)
    c1 = c0 * 0.044715
    import struct
    def f2u(x): return struct.unpack("<I", struct.pack("<f", x))[0]
    e(f"  s_mov_b32 s44, {f2u(c0):#x}")
    e(f"  s_mov_b32 s45, {f2u(c1):#x}")
    e("  s_mov_b32 s46, 0xffff0000")
    e("  s_nop 7")
    for a in range(4):
        dst = 24 + (a & 1) * 4
        for tt in range(2):
            g = acc(0, tt, a); u = acc(1, tt, a)
            T = 32 + tt * 16
            for p in range(2):
                e(f"  v_cvt_pk_bf16_f32 v{T}, v{g + 2*p}, v{g + 2*p + 1}")
                e(f"  v_cvt_pk_bf16_f32 v{T+1}, v{u + 2*p}, v{u + 2*p + 1}")
                e(f"  v_lshlrev_b32 v{T+2}, 16, v{T}")
                e(f"  v_and_b32 v{T+3}, s46, v{T}")
                e(f"  v_lshlrev_b32 v{T+4}, 16, v{T+1}")
                e(f"  v_and_b32 v{T+5}, s46, v{T+1}")
                e(f"  v_mul_f32 v{T+6}, v{T+2}, v{T+2}")
                e(f"  v_mul_f32 v{T+7}, v{T+3}, v{T+3}")
                e(f"  v_mov_b32 v{T+8}, s44")
                e(f"  v_fma_f32 v{T+6}, v{T+6}, s45, v{T+8}")
                e(f"  v_fma_f32 v{T+7}, v{T+7}, s45, v{T+8}")
                e(f"  v_mul_f32 v{T+6}, v{T+6}, v{T+2}")
                e(f"  v_mul_f32 v{T+7}, v{T+7}, v{T+3}")
                e(f"  v_exp_f32 v{T+6}, v{T+6}")
                e(f"  v_exp_f32 v{T+7}, v{T+7}")
                e("  s_nop 0")
                e(f"  v_add_f32 v{T+6}, 1.0, v{T+6}")
                e(f"  v_add_f32 v{T+7}, 1.0, v{T+7}")
                e(f"  v_rcp_f32 v{T+6}, v{T+6}")
                e(f"  v_rcp_f32 v{T+7}, v{T+7}")
                e("  s_nop 0")
                e(f"  v_mul_f32 v{T+6}, v{T+6}, v{T+2}")
                e(f"  v_mul_f32 v{T+7}, v{T+7}, v{T+3}")
                e(f"  v_cvt_pk_bf16_f32 v{T+6}, v{T+6}, v{T+7}")
                e(f"  v_lshlrev_b32 v{T+7}, 16, v{T+6}")
                e(f"  v_and_b32 v{T+6}, s46, v{T+6}")
                e(f"  v_mul_f32 v{T+7}, v{T+7}, v{T+4}")
                e(f"  v_mul_f32 v{T+6}, v{T+6}, v{T+5}")
                e(f"  v_cvt_pk_bf16_f32 v{dst + tt*2 + p}, v{T+7}, v{T+6}")
        e(f"  s_add_u32 s43, s42, {a * KB2 * 1024}")
        e(f"  buffer_store_dwordx4 v[{dst}:{dst+3}], v20, s[28:31], s43 offen")
    e("  s_endpgm")

    e("L1_transposer:")
    e("  s_lshl_b32 s18, s14, 2")
    e("  s_add_u32 s18, s18, s15")
    e("  s_sub_u32 s18, s18, 28")
    e("  s_lshl_b32 s19, s14, 3")
    e("  s_add_u32 s19, s19, s15")
    e("  s_sub_u32 s19, s19, 48")
    e("  s_cmp_lt_u32 s14, 6")
    e("  s_cselect_b32 s18, s18, s19")
    e("  s_mov_b32 s20, s10")
    e("  s_and_b32 s21, s11, 0xffff")
    e(f"  s_mov_b32 s22, {F * D * 2}")
    e("  s_mov_b32 s23, 0x00020000")
    e("  s_mul_i32 s33, s32, 160")
    e("  s_mov_b32 s34, 52429")
    for q in range(5):
        e(f"  v_add_u32 v20, {q * 64}, v1")
        e("  v_mul_lo_u32 v21, v20, s34")
        e("  v_lshrrev_b32 v21, 19, v21")
        e("  v_mul_u32_u24 v22, 10, v21")
        e("  v_sub_u32 v22, v20, v22")
        e("  v_mul_u32_u24 v21, 1280, v21")
        e("  v_lshlrev_b32 v22, 4, v22")
        e(f"  v_add3_u32 v{2 + q}, v21, v22, s33")
    e("  v_lshrrev_b32 v21, 2, v1")
    e("  v_mul_u32_u24 v21, 160, v21")
    e("  v_and_b32 v22, 3, v1")
    e("  v_lshlrev_b32 v22, 3, v22")
    e("  s_mul_i32 s35, s32, 5120")
    e("  v_add3_u32 v7, v21, v22, s35")
    e("  v_lshlrev_b32 v8, 4, v1")
    e("  s_mov_b32 s36, 0")
    e("L1_tr_loop:")
    e("  s_mul_i32 s37, s18, 40960")
    for q in range(5):
        e(f"  s_add_u32 m0, s35, {q * 1024}")
        e("  s_nop 0")
        e(f"  buffer_load_dwordx4 v{2 + q}, s[20:23], s37 offen lds")
    e("  s_waitcnt vmcnt(0)")
    for t in range(5):
        for h in range(2):
            r = 24 + t * 4 + h * 2
            e(f"  ds_read_b64_tr_b16 v[{r}:{r+1}], v7 offset:{h * 2560 + t * 32}")
    e(f"  s_mul_i32 s38, s32, {5 * KB2}")
    e("  s_add_u32 s38, s38, s18")
    e("  s_lshl_b32 s38, s38, 10")
    e("  s_waitcnt lgkmcnt(0)")
    for t in range(5):
        r = 24 + t * 4
        e(f"  s_add_u32 s39, s38, {WDT_OFF + t * KB2 * 1024}")
        e(f"  buffer_store_dwordx4 v[{r}:{r+3}], v8, s[28:31], s39 offen")
    e("  s_waitcnt vmcnt(0)")
    e("  s_add_u32 s18, s18, 40")
    e(f"  s_cmp_lt_u32 s18, {KB2}")
    e("  s_cbranch_scc1 L1_tr_loop")
    e("L1_end:")
    e("  s_endpgm")


def k2():
    DEPTH = 4
    NB = 14
    ACC = 16
    def acc(tn, a): return ACC + (a * 5 + tn) * 4
    RING = 96
    def hf(slot, a): return RING + slot * 36 + a * 4
    def wfr(slot, tn): return RING + slot * 36 + 16 + tn * 4

    e("standalone__geglu_ffn__prompt_k2_kernel:")
    e("  s_cmp_ge_u32 s2, 256")
    e("  s_cbranch_scc1 L2_end")
    e("  s_load_dwordx2 s[4:5], s[0:1], 32")
    e("  s_load_dwordx2 s[6:7], s[0:1], 48")
    e("  v_lshrrev_b32 v2, 6, v0")
    e("  v_and_b32 v1, 63, v0")
    e("  s_and_b32 s14, s2, 7")
    e("  s_lshr_b32 s15, s2, 3")
    e("  v_readfirstlane_b32 s32, v2")
    e("  s_and_b32 s16, s14, 1")
    e("  s_lshl_b32 s16, s16, 2")
    e("  s_and_b32 s17, s15, 3")
    e("  s_add_u32 s16, s16, s17")
    e("  s_lshr_b32 s17, s14, 1")
    e("  s_lshl_b32 s17, s17, 3")
    e("  s_lshr_b32 s18, s15, 2")
    e("  s_add_u32 s17, s17, s18")
    e("  s_mul_i32 s18, s32, 14")
    e("  s_cmp_eq_u32 s32, 3")
    e("  s_cselect_b32 s19, 1, 0")
    e("  s_sub_u32 s18, s18, s19")
    for a in range(4):
        e(f"  s_add_u32 s19, s32, {a}")
        e("  s_and_b32 s19, s19, 3")
        e("  s_lshl_b32 s20, s17, 2")
        e("  s_add_u32 s19, s19, s20")
        e(f"  s_mul_i32 s19, s19, {KB2}")
        e("  s_add_u32 s19, s19, s18")
        e(f"  s_lshl_b32 s{40 + a}, s19, 10")
    for tn in range(5):
        e("  s_mul_i32 s19, s16, 5")
        e(f"  s_add_u32 s19, s19, {tn}")
        e(f"  s_mul_i32 s19, s19, {KB2}")
        e("  s_add_u32 s19, s19, s18")
        e("  s_lshl_b32 s19, s19, 10")
        e(f"  s_add_u32 s{44 + tn}, s19, {WDT_OFF}")
    e("  v_lshlrev_b32 v3, 4, v1")
    e("  s_waitcnt lgkmcnt(0)")
    e("  s_mov_b32 s8, s6")
    e("  s_and_b32 s9, s7, 0xffff")
    e(f"  s_mov_b32 s10, {WS_USED}")
    e("  s_mov_b32 s11, 0x00020000")
    e("  s_mov_b32 s24, s4")
    e("  s_and_b32 s25, s5, 0xffff")
    e(f"  s_mov_b32 s26, {M * D * 2}")
    e("  s_mov_b32 s27, 0x00020000")

    def loads(b):
        slot = b % DEPTH
        L = []
        pre = []
        if b == NB - 1:
            pre.append("  s_cmp_lt_u32 s32, 2")
            for i in range(9):
                pre.append(f"  s_cselect_b32 s{40 + i}, s{40 + i}, 0x40000000")
        off = (b % 4) * 1024
        for tn in range(5):
            r = wfr(slot, tn)
            L.append(f"  buffer_load_dwordx4 v[{r}:{r+3}], v3, s[8:11], s{44 + tn} offen offset:{off}")
        for a in range(4):
            r = hf(slot, a)
            L.append(f"  buffer_load_dwordx4 v[{r}:{r+3}], v3, s[8:11], s{40 + a} offen offset:{off}")
        post = []
        if b % 4 == 3:
            for i in range(9):
                post.append(f"  s_add_u32 s{40 + i}, s{40 + i}, 4096")
        return pre, L, post

    for b in range(DEPTH):
        pre, L, post = loads(b)
        for l in pre + L + post: e(l)
    for i in range(80):
        e(f"  v_mov_b32 v{ACC + i}, 0")
    for a in range(1, 4):
        e(f"  s_add_u32 s19, s32, {a}")
        e("  s_and_b32 s19, s19, 3")
        e("  s_mul_i32 s19, s19, 15360")
        e(f"  s_add_u32 s19, s19, {(a - 1) * 5120}")
        e(f"  v_add_u32 v{3 + a}, s19, v3")
    e("  s_mul_i32 s19, s32, 15360")
    e("  v_add_u32 v7, s19, v3")

    for b in range(NB):
        slot = b % DEPTH
        nout = (min(b + DEPTH - 1, NB - 1) - b) * 9
        e(f"  s_waitcnt vmcnt({nout})")
        mf = []
        for a in range(4):
            for tn in range(5):
                c = acc(tn, a); w = wfr(slot, tn); h = hf(slot, a)
                mf.append(f"  v_mfma_f32_16x16x32_bf16 v[{c}:{c+3}], v[{w}:{w+3}], v[{h}:{h+3}], v[{c}:{c+3}]")
        for l in mf: e(l)
        if b + DEPTH < NB:
            pre, L, post = loads(b + DEPTH)
            for l in pre + L + post: e(l)
    e("  s_nop 7")
    for a in range(1, 4):
        for tn in range(5):
            c = acc(tn, a)
            e(f"  ds_write_b128 v{3 + a}, v[{c}:{c+3}] offset:{tn * 1024}")
    e("  s_waitcnt lgkmcnt(0)")
    e("  s_barrier")
    for r in range(3):
        for tn in range(5):
            t = RING + (r * 5 + tn) * 4
            e(f"  ds_read_b128 v[{t}:{t+3}], v7 offset:{r * 5120 + tn * 1024}")
    e("  v_and_b32 v8, 15, v1")
    e("  v_lshrrev_b32 v9, 4, v1")
    e("  s_lshl_b32 s19, s17, 6")
    e("  s_lshl_b32 s20, s32, 4")
    e("  s_add_u32 s19, s19, s20")
    e("  v_add_u32 v8, s19, v8")
    e("  v_mul_u32_u24 v8, 1280, v8")
    e("  s_mul_i32 s19, s16, 160")
    e("  v_add_u32 v8, s19, v8")
    e("  v_and_b32 v10, 1, v9")
    e("  v_lshlrev_b32 v10, 5, v10")
    e("  v_lshrrev_b32 v11, 1, v9")
    e("  v_lshl_add_u32 v10, v11, 4, v10")
    e("  v_add_u32 v10, v8, v10")
    e("  v_lshl_add_u32 v11, v9, 3, v8")
    e("  s_waitcnt lgkmcnt(0)")
    for tn in range(5):
        c = acc(tn, 0)
        for r in range(3):
            t = RING + (r * 5 + tn) * 4
            for i in range(4):
                e(f"  v_add_f32 v{c + i}, v{c + i}, v{t + i}")
    P = 200
    for tn in range(5):
        c = acc(tn, 0)
        e(f"  v_cvt_pk_bf16_f32 v{P + tn * 2}, v{c}, v{c + 1}")
        e(f"  v_cvt_pk_bf16_f32 v{P + tn * 2 + 1}, v{c + 2}, v{c + 3}")
    e("  s_nop 1")
    for p in range(2):
        r = P + p * 4
        e(f"  v_permlane16_swap_b32 v{r}, v{r + 2}")
        e(f"  v_permlane16_swap_b32 v{r + 1}, v{r + 3}")
    e("  s_nop 1")
    for p in range(2):
        r = P + p * 4
        e(f"  buffer_store_dwordx4 v[{r}:{r+3}], v10, s[24:27], 0 offen offset:{p * 64}")
    e(f"  buffer_store_dwordx2 v[{P + 8}:{P + 9}], v11, s[24:27], 0 offen offset:128")
    e("L2_end:")
    e("  s_endpgm")


HEADER = """; Kernarg layout for this problem (56 bytes, ptrs only, base s[0:1]):
; @launch kernel=standalone__geglu_ffn__prompt_k1_kernel grid=(256,1,1) block=(512,1,1) lds=147456
; @launch kernel=standalone__geglu_ffn__prompt_k2_kernel grid=(256,1,1) block=(256,1,1) lds=61440
.amdgcn_target "amdgcn-amd-amdhsa--gfx950"
.text
"""

def kd(name, vgpr, sgpr=64):
    acc = (vgpr + 3) // 4 * 4
    return f""".amdhsa_kernel {name}
  .amdhsa_next_free_vgpr {vgpr}
  .amdhsa_next_free_sgpr {sgpr}
  .amdhsa_accum_offset {acc}
  .amdhsa_group_segment_fixed_size 0
  .amdhsa_kernarg_size 56
  .amdhsa_user_sgpr_count 2
  .amdhsa_user_sgpr_kernarg_segment_ptr 1
  .amdhsa_system_sgpr_workgroup_id_x 1
  .amdhsa_float_denorm_mode_32 3
.end_amdhsa_kernel
"""

def main():
    e(HEADER.rstrip("\n"))
    for name, fn in (("standalone__geglu_ffn__prompt_k1_kernel", k1), ("standalone__geglu_ffn__prompt_k2_kernel", k2)):
        e(f".globl {name}")
        e(".p2align 8")
        e(f".type {name},@function")
        fn()
    e('.section .rodata,"a"')
    e(".p2align 6")
    e(kd("standalone__geglu_ffn__prompt_k1_kernel", 192))
    e(".p2align 6")
    e(kd("standalone__geglu_ffn__prompt_k2_kernel", 240))
    path = sys.argv[1] if len(sys.argv) > 1 else "standalone__geglu_ffn__prompt.s"
    open(path, "w").write("\n".join(out) + "\n")

main()
```

```python
import sys

M, D, F = 2048, 640, 1728
KB2 = F // 32
H_BYTES = M * F * 2
WDT_OFF = 8 << 20
WDT_BYTES = F * D * 2
WS_USED = WDT_OFF + WDT_BYTES

out = []
import os
INSTR = int(os.environ.get("INSTR", "0"))
DBG_WG = int(os.environ.get("DBG_WG", "0"))
STFLAG = os.environ.get("STFLAG", "")
def e(s=""):
    out.append(s)
_nst = [0]
def stamp_reset():
    _nst[0] = 0
def stamp():
    if not INSTR: return
    i = _nst[0]; _nst[0] += 1
    e(f"  s_memtime s[{64 + 2*i}:{65 + 2*i}]")
def wg_times(vt, label, kidx):
    if not INSTR: return
    e("  s_memrealtime s[60:61]")
    e("  s_cmp_lg_u32 s32, 0")
    e(f"  s_cbranch_scc1 {label}")
    e("  s_load_dwordx2 s[96:97], s[0:1], 48")
    e("  s_waitcnt lgkmcnt(0)")
    e("  s_and_b32 s97, s97, 0xffff")
    e("  s_mov_b32 s98, 0x4000000")
    e("  s_mov_b32 s99, 0x00020000")
    e("  s_lshl_b32 s59, s2, 3")
    e(f"  s_add_u32 s59, s59, {(32 << 20) + kidx * 65536}")
    e(f"  v_mov_b32 v{vt}, 0")
    e(f"  v_mov_b32 v{vt + 2}, s62")
    e(f"  v_mov_b32 v{vt + 3}, s60")
    e(f"  buffer_store_dwordx2 v[{vt + 2}:{vt + 3}], v{vt}, s[96:99], s59 offen")
    e(f"{label}:")
def stamp_flush(vt, label):
    if not INSTR: return
    n = _nst[0]
    e(f"  s_memrealtime s[{64 + 2*n}:{65 + 2*n}]")
    e(f"  s_cmp_lg_u32 s2, {DBG_WG}")
    e(f"  s_cbranch_scc1 {label}")
    e("  s_cmp_lg_u32 s32, 0")
    e(f"  s_cbranch_scc1 {label}")
    e("  s_load_dwordx2 s[96:97], s[0:1], 40")
    e("  s_waitcnt lgkmcnt(0)")
    e("  s_and_b32 s97, s97, 0xffff")
    e("  s_mov_b32 s98, 256")
    e("  s_mov_b32 s99, 0x00020000")
    e(f"  v_mov_b32 v{vt}, 0")
    for i in range(n + 1):
        e(f"  v_mov_b32 v{vt + 1}, s{64 + 2*i}")
        e(f"  buffer_store_dword v{vt + 1}, v{vt}, s[96:99], 0 offen offset:{4 * i}")
    e(f"  v_mov_b32 v{vt + 1}, s62")
    e(f"  buffer_store_dword v{vt + 1}, v{vt}, s[96:99], 0 offen offset:{4 * (n + 1)}")
    e(f"{label}:")

def interleave(main, others, lead=0):
    res = []
    others = list(others)
    res += others[:lead]
    others = others[lead:]
    n, k = len(main), len(others)
    if n == 0:
        return res + others
    j = 0
    for i, m in enumerate(main):
        res.append(m)
        tgt = ((i + 1) * k) // n
        while j < tgt:
            res.append(others[j]); j += 1
    res += others[j:]
    return res

STAGE = 49152
NST = D // 64

def k1():
    ACC = 64
    def acc(mat, tt, a): return ACC + ((mat * 2 + tt) * 4 + a) * 4
    FR = {0: 128, 1: 160}
    def xf(s, a): return FR[s] + a * 4
    def wf(s, mat, tt): return FR[s] + 16 + (mat * 2 + tt) * 4
    vXe, vXo, vWe, vWo = 2, 3, 4, 5
    def vRX(b, s): return 8 + b * 4 + s
    def vRW(b, tt): return 8 + b * 4 + 2 + tt
    vLane = 1

    e("standalone__geglu_ffn__prompt_k1_kernel:")
    e("  s_cmp_ge_u32 s2, 256")
    e("  s_cbranch_scc1 L1_end")
    stamp_reset()
    if INSTR: e("  s_memrealtime s[62:63]")
    stamp()
    e("  s_load_dwordx8 s[4:11], s[0:1], 0")
    e("  s_load_dwordx2 s[12:13], s[0:1], 48")
    e("  v_lshrrev_b32 v20, 6, v0")
    e("  v_and_b32 v1, 63, v0")
    e("  s_and_b32 s14, s2, 7")
    e("  s_lshr_b32 s15, s2, 3")
    e("  v_readfirstlane_b32 s32, v20")
    e("  s_lshr_b32 s16, s14, 1")
    e("  s_cmp_eq_u32 s16, 3")
    e("  s_cselect_b32 s17, 24, 28")
    e("  s_waitcnt lgkmcnt(0)")
    e("  s_mov_b32 s28, s12")
    e("  s_and_b32 s29, s13, 0xffff")
    e(f"  s_mov_b32 s30, {WS_USED}")
    e("  s_mov_b32 s31, 0x00020000")
    e("  s_cmp_ge_u32 s15, s17")
    e("  s_cbranch_scc1 L1_transposer")
    e("  s_and_b32 s18, s14, 1")
    e("  s_lshl_b32 s18, s18, 2")
    e("  s_and_b32 s19, s15, 3")
    e("  s_add_u32 s18, s18, s19")
    e("  s_mul_i32 s19, s16, 7")
    e("  s_lshr_b32 s33, s15, 2")
    e("  s_add_u32 s19, s19, s33")
    e("  s_mov_b32 s20, s4")
    e("  s_and_b32 s21, s5, 0xffff")
    e(f"  s_mov_b32 s22, {M * D * 2}")
    e("  s_mov_b32 s23, 0x00020000")
    e("  s_and_b32 s33, s32, 1")
    e("  s_cmp_eq_u32 s33, 0")
    e("  s_cselect_b32 s24, s6, s8")
    e("  s_cselect_b32 s25, s7, s9")
    e("  s_and_b32 s25, s25, 0xffff")
    e(f"  s_mov_b32 s26, {D * F * 2}")
    e("  s_mov_b32 s27, 0x00020000")
    e("  s_mul_i32 s34, s18, 327680")
    e("  s_lshr_b32 s35, s32, 1")
    e("  s_mul_i32 s36, s35, 55296")
    e("  s_lshl_b32 s37, s19, 7")
    e("  s_add_u32 s36, s36, s37")
    e("  s_lshl_b32 s38, s32, 12")
    e("  s_lshl_b32 s39, s33, 13")
    e("  s_lshl_b32 s40, s35, 11")
    e("  s_add_u32 s39, s39, s40")
    e("  s_add_u32 s39, s39, 32768")
    e("  v_lshrrev_b32 v20, 3, v1")
    e("  v_and_b32 v21, 7, v1")
    e("  v_lshrrev_b32 v22, 4, v1")
    e("  v_xor_b32 v23, v21, v22")
    e("  v_lshlrev_b32 v23, 4, v23")
    e("  v_mul_u32_u24 v24, 1280, v20")
    e("  s_mul_i32 s40, s32, 40960")
    e("  v_add3_u32 v2, v24, v23, s40")
    e("  v_xor_b32 v3, 64, v2")
    e("  v_and_b32 v23, 1, v22")
    e("  v_lshlrev_b32 v23, 1, v23")
    e("  v_xor_b32 v23, v21, v23")
    e("  v_lshlrev_b32 v23, 4, v23")
    e("  v_mul_u32_u24 v24, 3456, v20")
    e("  v_add_u32 v4, v24, v23")
    e("  v_xor_b32 v5, 64, v4")

    def dma(st):
        b = st % 3
        L = []
        for q in range(4):
            L.append(f"  s_add_u32 m0, s38, {b * STAGE + q * 1024}")
            L.append(f"  s_add_u32 s{42 + (q & 1)}, s34, {st * 128 + q * 10240}")
            L.append(f"  buffer_load_dwordx4 v{vXo if q & 1 else vXe}, s[20:23], s{42 + (q & 1)} offen lds")
        for o in range(2):
            L.append(f"  s_add_u32 m0, s39, {b * STAGE + o * 1024}")
            L.append(f"  s_add_u32 s{42 + o}, s36, {(st * 64 + 8 * o) * 3456}")
            L.append(f"  buffer_load_dwordx4 v{vWo if o else vWe}, s[24:27], s{42 + o} offen lds")
        return L

    for l in dma(0): e(l)
    for l in dma(1): e(l)

    e("  s_and_b32 s40, s32, 3")
    e("  s_lshr_b32 s41, s32, 2")
    e("  v_and_b32 v20, 15, v1")
    e("  v_lshrrev_b32 v21, 4, v1")
    e("  v_lshrrev_b32 v22, 1, v20")
    e("  v_xor_b32 v22, v21, v22")
    e("  v_lshlrev_b32 v22, 4, v22")
    e("  v_lshlrev_b32 v23, 7, v20")
    e("  s_lshl_b32 s42, s40, 13")
    e(f"  v_add3_u32 v{vRX(0,0)}, v22, v23, s42")
    e(f"  v_xor_b32 v{vRX(0,1)}, 64, v{vRX(0,0)}")
    e("  v_bfe_u32 v22, v1, 2, 2")
    e("  v_and_b32 v23, 3, v1")
    e("  v_lshrrev_b32 v24, 1, v22")
    e("  v_and_b32 v25, 1, v21")
    e("  v_lshl_add_u32 v24, v25, 1, v24")
    e("  v_lshl_add_u32 v25, v21, 3, v22")
    e("  v_lshlrev_b32 v25, 7, v25")
    e("  v_lshl_add_u32 v25, v23, 3, v25")
    e("  v_add_u32 v25, 32768, v25")
    e("  s_lshl_b32 s42, s41, 1")
    for tt in range(2):
        e(f"  s_add_u32 s43, s42, {tt}")
        e("  v_xor_b32 v26, s43, v24")
        e(f"  v_lshl_add_u32 v{vRW(0,tt)}, v26, 5, v25")
    for b in (1, 2):
        for s in range(2):
            e(f"  v_add_u32 v{vRX(b,s)}, {b * STAGE}, v{vRX(0,s)}")
            e(f"  v_add_u32 v{vRW(b,s)}, {b * STAGE}, v{vRW(0,s)}")
    for i in range(64):
        e(f"  v_mov_b32 v{ACC + i}, 0")

    def reads(st, s):
        b = st % 3
        L = []
        for mat in range(2):
            for tt in range(2):
                for h in range(2):
                    r = wf(s, mat, tt) + 2 * h
                    L.append(f"  ds_read_b64_tr_b16 v[{r}:{r+1}], v{vRW(b,tt)} offset:{mat * 8192 + s * 4096 + h * 512}")
        for a in range(4):
            r = xf(s, a)
            L.append(f"  ds_read_b128 v[{r}:{r+3}], v{vRX(b,s)} offset:{a * 2048}")
        return L

    def mfmas(s):
        L = []
        for a in range(4):
            for mat in range(2):
                for tt in range(2):
                    c = acc(mat, tt, a)
                    w = wf(s, mat, tt); x = xf(s, a)
                    L.append(f"  v_mfma_f32_16x16x32_bf16 v[{c}:{c+3}], v[{w}:{w+3}], v[{x}:{x+3}], v[{c}:{c+3}]")
        return L

    stamp()
    e("  s_waitcnt vmcnt(6)")
    e("  s_barrier")
    for st in range(NST):
        stamp()
        oth = reads(st, 0)
        if st + 2 < NST:
            oth += dma(st + 2)
        if st > 0:
            for l in interleave(mfmas(1), oth, lead=4): e(l)
        else:
            for l in oth: e(l)
        e("  s_waitcnt lgkmcnt(0)")
        for l in interleave(mfmas(0), reads(st, 1), lead=0): e(l)
        if st + 1 < NST:
            e(f"  s_waitcnt vmcnt({6 if st + 2 < NST else 0}) lgkmcnt(0)")
            e("  s_barrier")
        else:
            e("  s_waitcnt lgkmcnt(0)")
    for l in mfmas(1): e(l)
    stamp()
    e("  s_lshl_b32 s42, s18, 4")
    e("  s_lshl_b32 s43, s40, 2")
    e("  s_add_u32 s42, s42, s43")
    e(f"  s_mul_i32 s42, s42, {KB2}")
    e("  s_lshl_b32 s43, s19, 1")
    e("  s_add_u32 s42, s42, s43")
    e("  s_add_u32 s42, s42, s41")
    e("  s_lshl_b32 s42, s42, 10")
    e("  v_lshlrev_b32 v20, 4, v1")
    import math
    c0 = -2.0 * math.sqrt(2.0 / math.pi) * math.log2(math.e)
    c1 = c0 * 0.044715
    import struct
    def f2u(x): return struct.unpack("<I", struct.pack("<f", x))[0]
    e(f"  s_mov_b32 s44, {f2u(c0):#x}")
    e(f"  s_mov_b32 s45, {f2u(c1):#x}")
    e("  s_mov_b32 s46, 0xffff0000")
    e("  s_nop 7")
    for a in range(4):
        dst = 24 + (a & 1) * 4
        for tt in range(2):
            g = acc(0, tt, a); u = acc(1, tt, a)
            T = 32 + tt * 16
            for p in range(2):
                e(f"  v_cvt_pk_bf16_f32 v{T}, v{g + 2*p}, v{g + 2*p + 1}")
                e(f"  v_cvt_pk_bf16_f32 v{T+1}, v{u + 2*p}, v{u + 2*p + 1}")
                e(f"  v_lshlrev_b32 v{T+2}, 16, v{T}")
                e(f"  v_and_b32 v{T+3}, s46, v{T}")
                e(f"  v_lshlrev_b32 v{T+4}, 16, v{T+1}")
                e(f"  v_and_b32 v{T+5}, s46, v{T+1}")
                e(f"  v_mul_f32 v{T+6}, v{T+2}, v{T+2}")
                e(f"  v_mul_f32 v{T+7}, v{T+3}, v{T+3}")
                e(f"  v_mov_b32 v{T+8}, s44")
                e(f"  v_fma_f32 v{T+6}, v{T+6}, s45, v{T+8}")
                e(f"  v_fma_f32 v{T+7}, v{T+7}, s45, v{T+8}")
                e(f"  v_mul_f32 v{T+6}, v{T+6}, v{T+2}")
                e(f"  v_mul_f32 v{T+7}, v{T+7}, v{T+3}")
                e(f"  v_exp_f32 v{T+6}, v{T+6}")
                e(f"  v_exp_f32 v{T+7}, v{T+7}")
                e("  s_nop 0")
                e(f"  v_add_f32 v{T+6}, 1.0, v{T+6}")
                e(f"  v_add_f32 v{T+7}, 1.0, v{T+7}")
                e(f"  v_rcp_f32 v{T+6}, v{T+6}")
                e(f"  v_rcp_f32 v{T+7}, v{T+7}")
                e("  s_nop 0")
                e(f"  v_mul_f32 v{T+6}, v{T+6}, v{T+2}")
                e(f"  v_mul_f32 v{T+7}, v{T+7}, v{T+3}")
                e(f"  v_cvt_pk_bf16_f32 v{T+6}, v{T+6}, v{T+7}")
                e(f"  v_lshlrev_b32 v{T+7}, 16, v{T+6}")
                e(f"  v_and_b32 v{T+6}, s46, v{T+6}")
                e(f"  v_mul_f32 v{T+7}, v{T+7}, v{T+4}")
                e(f"  v_mul_f32 v{T+6}, v{T+6}, v{T+5}")
                e(f"  v_cvt_pk_bf16_f32 v{dst + tt*2 + p}, v{T+7}, v{T+6}")
        e(f"  s_add_u32 s43, s42, {a * KB2 * 1024}")
        e(f"  buffer_store_dwordx4 v[{dst}:{dst+3}], v20, s[28:31], s43 offen {STFLAG}")
    stamp()
    if INSTR: e("  s_waitcnt vmcnt(0)")
    stamp()
    stamp_flush(40, "L1_dbg")
    wg_times(40, "L1_wt", 0)
    e("  s_endpgm")

    e("L1_transposer:")
    e("  s_lshl_b32 s18, s14, 2")
    e("  s_add_u32 s18, s18, s15")
    e("  s_sub_u32 s18, s18, 28")
    e("  s_lshl_b32 s19, s14, 3")
    e("  s_add_u32 s19, s19, s15")
    e("  s_sub_u32 s19, s19, 48")
    e("  s_cmp_lt_u32 s14, 6")
    e("  s_cselect_b32 s18, s18, s19")
    e("  s_mov_b32 s20, s10")
    e("  s_and_b32 s21, s11, 0xffff")
    e(f"  s_mov_b32 s22, {F * D * 2}")
    e("  s_mov_b32 s23, 0x00020000")
    e("  s_mul_i32 s33, s32, 160")
    e("  s_mov_b32 s34, 52429")
    for q in range(5):
        e(f"  v_add_u32 v20, {q * 64}, v1")
        e("  v_mul_lo_u32 v21, v20, s34")
        e("  v_lshrrev_b32 v21, 19, v21")
        e("  v_mul_u32_u24 v22, 10, v21")
        e("  v_sub_u32 v22, v20, v22")
        e("  v_mul_u32_u24 v21, 1280, v21")
        e("  v_lshlrev_b32 v22, 4, v22")
        e(f"  v_add3_u32 v{2 + q}, v21, v22, s33")
    e("  v_lshrrev_b32 v21, 2, v1")
    e("  v_mul_u32_u24 v21, 160, v21")
    e("  v_and_b32 v22, 3, v1")
    e("  v_lshlrev_b32 v22, 3, v22")
    e("  s_mul_i32 s35, s32, 5120")
    e("  v_add3_u32 v7, v21, v22, s35")
    e("  v_lshlrev_b32 v8, 4, v1")
    e("  s_mov_b32 s36, 0")
    e("L1_tr_loop:")
    e("  s_mul_i32 s37, s18, 40960")
    for q in range(5):
        e(f"  s_add_u32 m0, s35, {q * 1024}")
        e("  s_nop 0")
        e(f"  buffer_load_dwordx4 v{2 + q}, s[20:23], s37 offen lds")
    e("  s_waitcnt vmcnt(0)")
    for t in range(5):
        for h in range(2):
            r = 24 + t * 4 + h * 2
            e(f"  ds_read_b64_tr_b16 v[{r}:{r+1}], v7 offset:{h * 2560 + t * 32}")
    e(f"  s_mul_i32 s38, s32, {5 * KB2}")
    e("  s_add_u32 s38, s38, s18")
    e("  s_lshl_b32 s38, s38, 10")
    e("  s_waitcnt lgkmcnt(0)")
    for t in range(5):
        r = 24 + t * 4
        e(f"  s_add_u32 s39, s38, {WDT_OFF + t * KB2 * 1024}")
        e(f"  buffer_store_dwordx4 v[{r}:{r+3}], v8, s[28:31], s39 offen {STFLAG}")
    e("  s_waitcnt vmcnt(0)")
    e("  s_add_u32 s18, s18, 40")
    e(f"  s_cmp_lt_u32 s18, {KB2}")
    e("  s_cbranch_scc1 L1_tr_loop")
    wg_times(40, "L1_wt2", 0)
    e("L1_end:")
    e("  s_endpgm")


def k2():
    DEPTH = 4
    NB = 14
    ACC = 16
    def acc(tn, a): return ACC + (a * 5 + tn) * 4
    RING = 96
    def hf(slot, a): return RING + slot * 36 + a * 4
    def wfr(slot, tn): return RING + slot * 36 + 16 + tn * 4

    e("standalone__geglu_ffn__prompt_k2_kernel:")
    e("  s_cmp_ge_u32 s2, 256")
    e("  s_cbranch_scc1 L2_end")
    stamp_reset()
    if INSTR: e("  s_memrealtime s[62:63]")
    stamp()
    e("  s_load_dwordx2 s[4:5], s[0:1], 32")
    e("  s_load_dwordx2 s[6:7], s[0:1], 48")
    e("  v_lshrrev_b32 v2, 6, v0")
    e("  v_and_b32 v1, 63, v0")
    e("  s_and_b32 s14, s2, 7")
    e("  s_lshr_b32 s15, s2, 3")
    e("  v_readfirstlane_b32 s32, v2")
    e("  s_and_b32 s16, s14, 1")
    e("  s_lshl_b32 s16, s16, 2")
    e("  s_and_b32 s17, s15, 3")
    e("  s_add_u32 s16, s16, s17")
    e("  s_lshr_b32 s17, s14, 1")
    e("  s_lshl_b32 s17, s17, 3")
    e("  s_lshr_b32 s18, s15, 2")
    e("  s_add_u32 s17, s17, s18")
    e("  s_mul_i32 s18, s32, 14")
    e("  s_cmp_eq_u32 s32, 3")
    e("  s_cselect_b32 s19, 1, 0")
    e("  s_sub_u32 s18, s18, s19")
    for a in range(4):
        e(f"  s_add_u32 s19, s32, {a}")
        e("  s_and_b32 s19, s19, 3")
        e("  s_lshl_b32 s20, s17, 2")
        e("  s_add_u32 s19, s19, s20")
        e(f"  s_mul_i32 s19, s19, {KB2}")
        e("  s_add_u32 s19, s19, s18")
        e(f"  s_lshl_b32 s{40 + a}, s19, 10")
    for tn in range(5):
        e("  s_mul_i32 s19, s16, 5")
        e(f"  s_add_u32 s19, s19, {tn}")
        e(f"  s_mul_i32 s19, s19, {KB2}")
        e("  s_add_u32 s19, s19, s18")
        e("  s_lshl_b32 s19, s19, 10")
        e(f"  s_add_u32 s{44 + tn}, s19, {WDT_OFF}")
    e("  v_lshlrev_b32 v3, 4, v1")
    e("  s_waitcnt lgkmcnt(0)")
    e("  s_mov_b32 s8, s6")
    e("  s_and_b32 s9, s7, 0xffff")
    e(f"  s_mov_b32 s10, {WS_USED}")
    e("  s_mov_b32 s11, 0x00020000")
    e("  s_mov_b32 s24, s4")
    e("  s_and_b32 s25, s5, 0xffff")
    e(f"  s_mov_b32 s26, {M * D * 2}")
    e("  s_mov_b32 s27, 0x00020000")

    def loads(b):
        slot = b % DEPTH
        L = []
        pre = []
        if b == NB - 1:
            pre.append("  s_cmp_lt_u32 s32, 2")
            for i in range(9):
                pre.append(f"  s_cselect_b32 s{40 + i}, s{40 + i}, 0x40000000")
        off = (b % 4) * 1024
        for tn in range(5):
            r = wfr(slot, tn)
            L.append(f"  buffer_load_dwordx4 v[{r}:{r+3}], v3, s[8:11], s{44 + tn} offen offset:{off}")
        for a in range(4):
            r = hf(slot, a)
            L.append(f"  buffer_load_dwordx4 v[{r}:{r+3}], v3, s[8:11], s{40 + a} offen offset:{off}")
        post = []
        if b % 4 == 3:
            for i in range(9):
                post.append(f"  s_add_u32 s{40 + i}, s{40 + i}, 4096")
        return pre, L, post

    for b in range(DEPTH):
        pre, L, post = loads(b)
        for l in pre + L + post: e(l)
    for i in range(80):
        e(f"  v_mov_b32 v{ACC + i}, 0")
    for a in range(1, 4):
        e(f"  s_add_u32 s19, s32, {a}")
        e("  s_and_b32 s19, s19, 3")
        e("  s_mul_i32 s19, s19, 15360")
        e(f"  s_add_u32 s19, s19, {(a - 1) * 5120}")
        e(f"  v_add_u32 v{3 + a}, s19, v3")
    e("  s_mul_i32 s19, s32, 15360")
    e("  v_add_u32 v7, s19, v3")

    for b in range(NB):
        slot = b % DEPTH
        nout = (min(b + DEPTH - 1, NB - 1) - b) * 9
        e(f"  s_waitcnt vmcnt({nout})")
        if b % 2 == 0: stamp()
        mf = []
        for a in range(4):
            for tn in range(5):
                c = acc(tn, a); w = wfr(slot, tn); h = hf(slot, a)
                mf.append(f"  v_mfma_f32_16x16x32_bf16 v[{c}:{c+3}], v[{w}:{w+3}], v[{h}:{h+3}], v[{c}:{c+3}]")
        for l in mf: e(l)
        if b + DEPTH < NB:
            pre, L, post = loads(b + DEPTH)
            for l in pre + L + post: e(l)
    stamp()
    e("  s_nop 7")
    for a in range(1, 4):
        for tn in range(5):
            c = acc(tn, a)
            e(f"  ds_write_b128 v{3 + a}, v[{c}:{c+3}] offset:{tn * 1024}")
    e("  s_waitcnt lgkmcnt(0)")
    e("  s_barrier")
    for r in range(3):
        for tn in range(5):
            t = RING + (r * 5 + tn) * 4
            e(f"  ds_read_b128 v[{t}:{t+3}], v7 offset:{r * 5120 + tn * 1024}")
    e("  v_and_b32 v8, 15, v1")
    e("  v_lshrrev_b32 v9, 4, v1")
    e("  s_lshl_b32 s19, s17, 6")
    e("  s_lshl_b32 s20, s32, 4")
    e("  s_add_u32 s19, s19, s20")
    e("  v_add_u32 v8, s19, v8")
    e("  v_mul_u32_u24 v8, 1280, v8")
    e("  s_mul_i32 s19, s16, 160")
    e("  v_add_u32 v8, s19, v8")
    e("  v_and_b32 v10, 1, v9")
    e("  v_lshlrev_b32 v10, 5, v10")
    e("  v_lshrrev_b32 v11, 1, v9")
    e("  v_lshl_add_u32 v10, v11, 4, v10")
    e("  v_add_u32 v10, v8, v10")
    e("  v_lshl_add_u32 v11, v9, 3, v8")
    e("  s_waitcnt lgkmcnt(0)")
    for tn in range(5):
        c = acc(tn, 0)
        for r in range(3):
            t = RING + (r * 5 + tn) * 4
            for i in range(4):
                e(f"  v_add_f32 v{c + i}, v{c + i}, v{t + i}")
    P = 200
    for tn in range(5):
        c = acc(tn, 0)
        e(f"  v_cvt_pk_bf16_f32 v{P + tn * 2}, v{c}, v{c + 1}")
        e(f"  v_cvt_pk_bf16_f32 v{P + tn * 2 + 1}, v{c + 2}, v{c + 3}")
    e("  s_nop 1")
    for p in range(2):
        r = P + p * 4
        e(f"  v_permlane16_swap_b32 v{r}, v{r + 2}")
        e(f"  v_permlane16_swap_b32 v{r + 1}, v{r + 3}")
    e("  s_nop 1")
    for p in range(2):
        r = P + p * 4
        e(f"  buffer_store_dwordx4 v[{r}:{r+3}], v10, s[24:27], 0 offen offset:{p * 64}")
    e(f"  buffer_store_dwordx2 v[{P + 8}:{P + 9}], v11, s[24:27], 0 offen offset:128")
    stamp()
    if INSTR: e("  s_waitcnt vmcnt(0)")
    stamp()
    stamp_flush(220, "L2_dbg")
    wg_times(220, "L2_wt", 1)
    e("L2_end:")
    e("  s_endpgm")


HEADER = """; Kernarg layout for this problem (56 bytes, ptrs only, base s[0:1]):
; @launch kernel=standalone__geglu_ffn__prompt_k1_kernel grid=(256,1,1) block=(512,1,1) lds=147456
; @launch kernel=standalone__geglu_ffn__prompt_k2_kernel grid=(256,1,1) block=(256,1,1) lds=61440
.amdgcn_target "amdgcn-amd-amdhsa--gfx950"
.text
"""

def kd(name, vgpr, sgpr=102):
    acc = (vgpr + 3) // 4 * 4
    return f""".amdhsa_kernel {name}
  .amdhsa_next_free_vgpr {vgpr}
  .amdhsa_next_free_sgpr {sgpr}
  .amdhsa_accum_offset {acc}
  .amdhsa_group_segment_fixed_size 0
  .amdhsa_kernarg_size 56
  .amdhsa_user_sgpr_count 2
  .amdhsa_user_sgpr_kernarg_segment_ptr 1
  .amdhsa_system_sgpr_workgroup_id_x 1
  .amdhsa_float_denorm_mode_32 3
.end_amdhsa_kernel
"""

def main():
    e(HEADER.rstrip("\n"))
    for name, fn in (("standalone__geglu_ffn__prompt_k1_kernel", k1), ("standalone__geglu_ffn__prompt_k2_kernel", k2)):
        e(f".globl {name}")
        e(".p2align 8")
        e(f".type {name},@function")
        fn()
    e('.section .rodata,"a"')
    e(".p2align 6")
    e(kd("standalone__geglu_ffn__prompt_k1_kernel", 192))
    e(".p2align 6")
    e(kd("standalone__geglu_ffn__prompt_k2_kernel", 240))
    path = sys.argv[1] if len(sys.argv) > 1 else "standalone__geglu_ffn__prompt.s"
    open(path, "w").write("\n".join(out) + "\n")

main()
```

```python
import sys

M, D, F = 2048, 640, 1728
KB2 = F // 32
H_BYTES = M * F * 2
WDT_OFF = 8 << 20
WDT_BYTES = F * D * 2
WS_USED = WDT_OFF + WDT_BYTES

out = []
import os
INSTR = int(os.environ.get("INSTR", "0"))
DBG_WG = int(os.environ.get("DBG_WG", "0"))
STFLAG = os.environ.get("STFLAG", "sc1")
ROT = int(os.environ.get("ROT", "0"))
EXP = os.environ.get("EXP", "")
PF = int(os.environ.get("PF", "1"))
def e(s=""):
    out.append(s)
_nst = [0]
def stamp_reset():
    _nst[0] = 0
def stamp():
    if not INSTR: return
    i = _nst[0]; _nst[0] += 1
    e(f"  s_memtime s[{64 + 2*i}:{65 + 2*i}]")
def wg_times(vt, label, kidx):
    if not INSTR: return
    e("  s_memrealtime s[60:61]")
    e("  s_cmp_lg_u32 s32, 0")
    e(f"  s_cbranch_scc1 {label}")
    e("  s_load_dwordx2 s[96:97], s[0:1], 48")
    e("  s_waitcnt lgkmcnt(0)")
    e("  s_and_b32 s97, s97, 0xffff")
    e("  s_mov_b32 s98, 0x4000000")
    e("  s_mov_b32 s99, 0x00020000")
    e("  s_lshl_b32 s59, s2, 3")
    e(f"  s_add_u32 s59, s59, {(32 << 20) + kidx * 65536}")
    e(f"  v_mov_b32 v{vt}, 0")
    e(f"  v_mov_b32 v{vt + 2}, s62")
    e(f"  v_mov_b32 v{vt + 3}, s60")
    e(f"  buffer_store_dwordx2 v[{vt + 2}:{vt + 3}], v{vt}, s[96:99], s59 offen")
    e(f"{label}:")
def stamp_flush(vt, label):
    if not INSTR: return
    n = _nst[0]
    e(f"  s_memrealtime s[{64 + 2*n}:{65 + 2*n}]")
    e(f"  s_cmp_lg_u32 s2, {DBG_WG}")
    e(f"  s_cbranch_scc1 {label}")
    e("  s_cmp_lg_u32 s32, 0")
    e(f"  s_cbranch_scc1 {label}")
    e("  s_load_dwordx2 s[96:97], s[0:1], 40")
    e("  s_waitcnt lgkmcnt(0)")
    e("  s_and_b32 s97, s97, 0xffff")
    e("  s_mov_b32 s98, 256")
    e("  s_mov_b32 s99, 0x00020000")
    e(f"  v_mov_b32 v{vt}, 0")
    for i in range(n + 1):
        e(f"  v_mov_b32 v{vt + 1}, s{64 + 2*i}")
        e(f"  buffer_store_dword v{vt + 1}, v{vt}, s[96:99], 0 offen offset:{4 * i}")
    e(f"  v_mov_b32 v{vt + 1}, s62")
    e(f"  buffer_store_dword v{vt + 1}, v{vt}, s[96:99], 0 offen offset:{4 * (n + 1)}")
    e(f"{label}:")

def interleave(main, others, lead=0):
    res = []
    others = list(others)
    res += others[:lead]
    others = others[lead:]
    n, k = len(main), len(others)
    if n == 0:
        return res + others
    j = 0
    for i, m in enumerate(main):
        res.append(m)
        tgt = ((i + 1) * k) // n
        while j < tgt:
            res.append(others[j]); j += 1
    res += others[j:]
    return res

STAGE = 49152
NST = D // 64

def k1():
    ACC = 64
    def acc(mat, tt, a): return ACC + ((mat * 2 + tt) * 4 + a) * 4
    FR = {0: 128, 1: 160}
    def xf(s, a): return FR[s] + a * 4
    def wf(s, mat, tt): return FR[s] + 16 + (mat * 2 + tt) * 4
    vXe, vXo, vWe, vWo = 2, 3, 4, 5
    def vRXb(s): return 8 + s
    def vRWb(tt): return 10 + tt
    def vRX(s): return 12 + s
    def vRW(tt): return 14 + tt

    e("standalone__geglu_ffn__prompt_k1_kernel:")
    e("  s_cmp_ge_u32 s2, 256")
    e("  s_cbranch_scc1 L1_end")
    stamp_reset()
    if INSTR: e("  s_memrealtime s[62:63]")
    stamp()
    e("  s_load_dwordx8 s[4:11], s[0:1], 0")
    e("  s_load_dwordx2 s[12:13], s[0:1], 48")
    e("  v_lshrrev_b32 v20, 6, v0")
    e("  v_and_b32 v1, 63, v0")
    e("  s_and_b32 s14, s2, 7")
    e("  s_lshr_b32 s15, s2, 3")
    e("  v_readfirstlane_b32 s32, v20")
    e("  s_lshr_b32 s16, s14, 1")
    e("  s_cmp_eq_u32 s16, 3")
    e("  s_cselect_b32 s17, 24, 28")
    e("  v_lshrrev_b32 v20, 3, v1")
    e("  v_and_b32 v21, 7, v1")
    e("  v_lshrrev_b32 v22, 4, v1")
    e("  v_xor_b32 v23, v21, v22")
    e("  v_lshlrev_b32 v23, 4, v23")
    e("  v_mul_u32_u24 v24, 1280, v20")
    e("  s_mul_i32 s40, s32, 40960")
    e("  v_add3_u32 v2, v24, v23, s40")
    e("  v_xor_b32 v3, 64, v2")
    e("  v_and_b32 v23, 1, v22")
    e("  v_lshlrev_b32 v23, 1, v23")
    e("  v_xor_b32 v23, v21, v23")
    e("  v_lshlrev_b32 v23, 4, v23")
    e("  v_mul_u32_u24 v24, 3456, v20")
    e("  v_add_u32 v4, v24, v23")
    e("  v_xor_b32 v5, 64, v4")
    e("  s_and_b32 s18, s14, 1")
    e("  s_lshl_b32 s18, s18, 2")
    e("  s_and_b32 s19, s15, 3")
    e("  s_add_u32 s18, s18, s19")
    e("  s_mul_i32 s19, s16, 7")
    e("  s_lshr_b32 s33, s15, 2")
    e("  s_add_u32 s19, s19, s33")
    e("  s_and_b32 s33, s32, 1")
    e("  s_mul_i32 s34, s18, 327680")
    e("  s_lshr_b32 s35, s32, 1")
    e("  s_mul_i32 s36, s35, 55296")
    e("  s_lshl_b32 s37, s19, 7")
    e("  s_add_u32 s36, s36, s37")
    e("  s_lshl_b32 s38, s32, 12")
    e("  s_lshl_b32 s39, s33, 13")
    e("  s_lshl_b32 s40, s35, 11")
    e("  s_add_u32 s39, s39, s40")
    e("  s_add_u32 s39, s39, 32768")
    if ROT:
        e("  s_lshr_b32 s52, s15, 2")
        e("  s_mul_i32 s52, s52, 3")
        e("  s_and_b32 s53, s15, 3")
        e("  s_lshl_b32 s53, s53, 1")
        e("  s_add_u32 s52, s52, s53")
        for _ in range(2):
            e("  s_cmp_ge_u32 s52, 10")
            e("  s_cselect_b32 s53, 10, 0")
            e("  s_sub_u32 s52, s52, s53")
        e(f"  s_mov_b32 s55, {(-9 * 128) & 0xffffffff:#x}")
        e("  s_movk_i32 s56, 128")
        e(f"  s_mov_b32 s57, {(-9 * 64 * 3456) & 0xffffffff:#x}")
        e(f"  s_mov_b32 s58, {64 * 3456}")
        e("  s_lshl_b32 s53, s52, 7")
        e("  s_add_u32 s34, s34, s53")
        e(f"  s_mul_i32 s53, s52, {64 * 3456}")
        e("  s_add_u32 s36, s36, s53")
    e(f"  s_mov_b32 s22, {M * D * 2}")
    e("  s_mov_b32 s23, 0x00020000")
    e(f"  s_mov_b32 s26, {D * F * 2}")
    e("  s_mov_b32 s27, 0x00020000")
    e("  s_cmp_eq_u32 s33, 0")
    e("  s_waitcnt lgkmcnt(0)")
    e("  s_cselect_b32 s24, s6, s8")
    e("  s_cselect_b32 s25, s7, s9")
    e("  s_mov_b32 s20, s4")
    e("  s_and_b32 s21, s5, 0xffff")
    e("  s_and_b32 s25, s25, 0xffff")
    PD = int(os.environ.get("PD", "5"))
    NPF = 2 * (PD - 2) if PF else 0
    def pf_setup():
        if not PF: return
        e("  s_lshr_b32 s42, s17, 2")
        e("  s_mul_i32 s42, s42, s32")
        e("  s_lshr_b32 s43, s15, 2")
        e("  s_add_u32 s42, s42, s43")
        e("  s_mul_i32 s43, s42, 10240")
        e("  s_mul_i32 s44, s32, 40960")
        e("  s_sub_u32 s43, s43, s44")
        e("  s_add_u32 s60, s34, s43")
        e("  s_cmp_lt_u32 s42, 32")
        e("  s_cselect_b32 s60, s60, 0x40000000")
        e("  s_and_b32 s42, s15, 3")
        e("  s_lshl_b32 s42, s42, 1")
        e("  s_add_u32 s42, s42, s35")
        e(f"  s_mul_i32 s42, s42, {8 * 3456}")
        e("  s_add_u32 s42, s42, s37")
        e(f"  s_add_u32 s61, s42, {2 * 64 * 3456}")
        e("  s_cmp_lt_u32 s32, 4")
        e("  s_cselect_b32 s61, s61, 0x40000000")
    def pf_stage():
        if not PF: return []
        return [f"  buffer_load_dwordx4 v[192:195], v{vXe}, s[20:23], s60 offen",
                f"  buffer_load_dwordx4 v[196:199], v{vWe}, s[24:27], s61 offen",
                "  s_add_u32 s60, s60, 128", f"  s_add_u32 s61, s61, {64 * 3456}"]
    def prefetch():
        pf_setup()
        for st in range(2, PD):
            for l in pf_stage(): e(l)
    if "pfirst" in EXP: prefetch()
    if "pfwait" in EXP:
        stamp()
        e("  s_waitcnt vmcnt(0)")
        stamp()
        e("  s_barrier")
        stamp()
    e("  s_cmp_ge_u32 s15, s17")
    e("  s_cbranch_scc1 L1_transposer")

    def dma(wb):
        L = []
        for q in range(4):
            L.append(f"  s_add_u32 m0, s{50 + 0}, {q * 1024}")
            L.append(f"  s_add_u32 s{42 + (q & 1)}, s34, {q * 10240}")
            L.append(f"  buffer_load_dwordx4 v{vXo if q & 1 else vXe}, s[20:23], s{42 + (q & 1)} offen lds")
        for o in range(2):
            L.append(f"  s_add_u32 m0, s{51}, {o * 1024}")
            L.append(f"  s_add_u32 s{42 + o}, s36, {8 * o * 3456}")
            L.append(f"  buffer_load_dwordx4 v{vWo if o else vWe}, s[24:27], s{42 + o} offen lds")
        return L
    def dma_pre(wb):
        return [f"  s_add_u32 s50, s38, {wb}", f"  s_add_u32 s51, s39, {wb}"]
    def dma_post():
        if not ROT:
            return ["  s_add_u32 s34, s34, 128", f"  s_add_u32 s36, s36, {64 * 3456}"]
        return ["  s_add_u32 s52, s52, 1", "  s_cmp_eq_u32 s52, 10",
                "  s_cselect_b32 s52, 0, s52",
                "  s_cselect_b32 s53, s55, s56",
                "  s_cselect_b32 s54, s57, s58",
                "  s_add_u32 s34, s34, s53", "  s_add_u32 s36, s36, s54"]

    for st in range(2):
        for l in dma_pre(st * STAGE) + dma(0) + dma_post(): e(l)
    if "pfirst" not in EXP: prefetch()

    e("  s_mov_b32 s28, s12")
    e("  s_and_b32 s29, s13, 0xffff")
    e(f"  s_mov_b32 s30, {WS_USED}")
    e("  s_mov_b32 s31, 0x00020000")
    e("  s_and_b32 s40, s32, 3")
    e("  s_lshr_b32 s41, s32, 2")
    e("  v_and_b32 v20, 15, v1")
    e("  v_lshrrev_b32 v21, 4, v1")
    e("  v_lshrrev_b32 v22, 1, v20")
    e("  v_xor_b32 v22, v21, v22")
    e("  v_lshlrev_b32 v22, 4, v22")
    e("  v_lshlrev_b32 v23, 7, v20")
    e("  s_lshl_b32 s42, s40, 13")
    e(f"  v_add3_u32 v{vRXb(0)}, v22, v23, s42")
    e(f"  v_xor_b32 v{vRXb(1)}, 64, v{vRXb(0)}")
    e("  v_bfe_u32 v22, v1, 2, 2")
    e("  v_and_b32 v23, 3, v1")
    e("  v_lshrrev_b32 v24, 1, v22")
    e("  v_and_b32 v25, 1, v21")
    e("  v_lshl_add_u32 v24, v25, 1, v24")
    e("  v_lshl_add_u32 v25, v21, 3, v22")
    e("  v_lshlrev_b32 v25, 7, v25")
    e("  v_lshl_add_u32 v25, v23, 3, v25")
    e("  v_add_u32 v25, 32768, v25")
    e("  s_lshl_b32 s42, s41, 1")
    for tt in range(2):
        e(f"  s_add_u32 s43, s42, {tt}")
        e("  v_xor_b32 v26, s43, v24")
        e(f"  v_lshl_add_u32 v{vRWb(tt)}, v26, 5, v25")
    for i in range(64):
        e(f"  v_mov_b32 v{ACC + i}, 0")
    for i in range(32):
        e(f"  v_mov_b32 v{FR[1] + i}, 0")
    e(f"  s_mov_b32 s47, {2 * STAGE}")
    e("  s_mov_b32 s48, 0")
    e("  s_mov_b32 s49, 0")

    def reads(s):
        L = []
        if "nords" in EXP: return L
        for mat in range(2):
            for tt in range(2):
                for h in range(2):
                    r = wf(s, mat, tt) + 2 * h
                    L.append(f"  ds_read_b64_tr_b16 v[{r}:{r+1}], v{vRW(tt)} offset:{mat * 8192 + s * 4096 + h * 512}")
        for a in range(4):
            r = xf(s, a)
            L.append(f"  ds_read_b128 v[{r}:{r+3}], v{vRX(s)} offset:{a * 2048}")
        return L

    def mfmas(s):
        L = []
        for a in range(4):
            for mat in range(2):
                for tt in range(2):
                    c = acc(mat, tt, a)
                    w = wf(s, mat, tt); x = xf(s, a)
                    L.append(f"  v_mfma_f32_16x16x32_bf16 v[{c}:{c+3}], v[{w}:{w+3}], v[{x}:{x+3}], v[{c}:{c+3}]")
        return L

    stamp()
    late_pf = NPF
    PFI = 2 if PF else 0
    e(f"  s_waitcnt vmcnt({6 + late_pf})")
    def body(endwait):
        if "nobar" not in EXP: e("  s_barrier")
        for s_ in range(2):
            e(f"  v_add_u32 v{vRX(s_)}, s48, v{vRXb(s_)}")
            e(f"  v_add_u32 v{vRW(s_)}, s48, v{vRWb(s_)}")
        pre = dma_pre("s47") + [f"  s_cmp_lt_u32 s49, {NST - 2}",
                                "  s_cselect_b32 s34, s34, 0x40000000",
                                "  s_cselect_b32 s36, s36, 0x40000000"]
        dm = dma(0)
        if "nodma" in EXP: dm = []
        if "spread" in EXP:
            oth = reads(0) + pre + dm[:9]
            dmB = dm[9:] + dma_post()
        else:
            pfl = []
            if PF:
                pfl = [f"  s_cmp_lt_u32 s49, {NST - PD}", "  s_cselect_b32 s60, s60, 0x40000000",
                       "  s_cselect_b32 s61, s61, 0x40000000"] + pf_stage()
            oth = reads(0) + pre + dm + dma_post()
            dmB = pfl
        for l in interleave(mfmas(1), oth, lead=(12 if "front" in EXP else 4)): e(l)
        e("  s_waitcnt lgkmcnt(0)")
        post = [f"  s_add_u32 s47, s47, {STAGE}", f"  s_cmp_eq_u32 s47, {3 * STAGE}", "  s_cselect_b32 s47, 0, s47",
                f"  s_add_u32 s48, s48, {STAGE}", f"  s_cmp_eq_u32 s48, {3 * STAGE}", "  s_cselect_b32 s48, 0, s48",
                "  s_add_u32 s49, s49, 1"]
        for l in interleave(mfmas(0), reads(1) + dmB + post, lead=(12 if "front" in EXP else 0)): e(l)
        e(f"  s_cmp_lt_u32 s49, {NST}")
        e(f"  s_waitcnt vmcnt({endwait}) lgkmcnt(0)")
    if late_pf:
        body(6 + late_pf + PFI)
    e("  .p2align 6")
    e("L1_loop:")
    body(6 + 2 * PFI)
    e("  s_cbranch_scc1 L1_loop")
    for l in mfmas(1): e(l)
    stamp()
    e("  s_lshl_b32 s42, s18, 4")
    e("  s_lshl_b32 s43, s40, 2")
    e("  s_add_u32 s42, s42, s43")
    e(f"  s_mul_i32 s42, s42, {KB2}")
    e("  s_lshl_b32 s43, s19, 1")
    e("  s_add_u32 s42, s42, s43")
    e("  s_add_u32 s42, s42, s41")
    e("  s_lshl_b32 s42, s42, 10")
    e("  v_lshlrev_b32 v20, 4, v1")
    import math, struct
    c0 = -2.0 * math.sqrt(2.0 / math.pi) * math.log2(math.e)
    c1 = c0 * 0.044715
    def f2u(x): return struct.unpack("<I", struct.pack("<f", x))[0]
    e(f"  v_mov_b32 v16, {f2u(c0):#x}")
    e(f"  v_mov_b32 v17, {f2u(c0):#x}")
    e(f"  v_mov_b32 v18, {f2u(c1):#x}")
    e(f"  v_mov_b32 v19, {f2u(c1):#x}")
    e("  s_nop 3")
    for a in range(4):
        dst = 24 + (a & 1) * 4
        pairs = [(tt, p) for tt in range(2) for p in range(2)]
        T = [32 + 4 * i for i in range(4)]
        def G(i): tt, p = pairs[i]; return acc(0, tt, a) + 2 * p
        def U(i): tt, p = pairs[i]; return acc(1, tt, a) + 2 * p
        for i in range(4): e(f"  v_pk_mul_f32 v[{T[i]}:{T[i]+1}], v[{G(i)}:{G(i)+1}], v[{G(i)}:{G(i)+1}]")
        for i in range(4): e(f"  v_pk_fma_f32 v[{T[i]}:{T[i]+1}], v[{T[i]}:{T[i]+1}], v[18:19], v[16:17]")
        for i in range(4): e(f"  v_pk_mul_f32 v[{T[i]}:{T[i]+1}], v[{T[i]}:{T[i]+1}], v[{G(i)}:{G(i)+1}]")
        for i in range(4):
            e(f"  v_exp_f32 v{T[i]}, v{T[i]}")
            e(f"  v_exp_f32 v{T[i]+1}, v{T[i]+1}")
        for i in range(4): e(f"  v_pk_mul_f32 v[{T[i]+2}:{T[i]+3}], v[{G(i)}:{G(i)+1}], v[{U(i)}:{U(i)+1}]")
        for i in range(4): e(f"  v_pk_add_f32 v[{T[i]}:{T[i]+1}], v[{T[i]}:{T[i]+1}], 1.0 op_sel_hi:[1,0]")
        for i in range(4):
            e(f"  v_rcp_f32 v{T[i]}, v{T[i]}")
            e(f"  v_rcp_f32 v{T[i]+1}, v{T[i]+1}")
        e("  s_nop 0")
        for i in range(4): e(f"  v_pk_mul_f32 v[{T[i]}:{T[i]+1}], v[{T[i]}:{T[i]+1}], v[{T[i]+2}:{T[i]+3}]")
        for i in range(4): e(f"  v_cvt_pk_bf16_f32 v{dst + i}, v{T[i]}, v{T[i]+1}")
        e(f"  s_add_u32 s43, s42, {a * KB2 * 1024}")
        e(f"  buffer_store_dwordx4 v[{dst}:{dst+3}], v20, s[28:31], s43 offen {STFLAG}")
    stamp()
    if INSTR: e("  s_waitcnt vmcnt(0)")
    stamp()
    stamp_flush(40, "L1_dbg")
    wg_times(40, "L1_wt", 0)
    e("  s_endpgm")

    e("L1_transposer:")
    e("  s_mov_b32 s28, s12")
    e("  s_and_b32 s29, s13, 0xffff")
    e(f"  s_mov_b32 s30, {WS_USED}")
    e("  s_mov_b32 s31, 0x00020000")
    e("  s_lshl_b32 s18, s14, 2")
    e("  s_add_u32 s18, s18, s15")
    e("  s_sub_u32 s18, s18, 28")
    e("  s_lshl_b32 s19, s14, 3")
    e("  s_add_u32 s19, s19, s15")
    e("  s_sub_u32 s19, s19, 48")
    e("  s_cmp_lt_u32 s14, 6")
    e("  s_cselect_b32 s18, s18, s19")
    e("  s_mov_b32 s20, s10")
    e("  s_and_b32 s21, s11, 0xffff")
    e(f"  s_mov_b32 s22, {F * D * 2}")
    e("  s_mov_b32 s23, 0x00020000")
    e("  s_mul_i32 s33, s32, 160")
    e("  s_mov_b32 s34, 52429")
    for q in range(5):
        e(f"  v_add_u32 v20, {q * 64}, v1")
        e("  v_mul_lo_u32 v21, v20, s34")
        e("  v_lshrrev_b32 v21, 19, v21")
        e("  v_mul_u32_u24 v22, 10, v21")
        e("  v_sub_u32 v22, v20, v22")
        e("  v_mul_u32_u24 v21, 1280, v21")
        e("  v_lshlrev_b32 v22, 4, v22")
        e(f"  v_add3_u32 v{2 + q}, v21, v22, s33")
    e("  v_lshrrev_b32 v21, 2, v1")
    e("  v_mul_u32_u24 v21, 160, v21")
    e("  v_and_b32 v22, 3, v1")
    e("  v_lshlrev_b32 v22, 3, v22")
    e("  s_mul_i32 s35, s32, 5120")
    e("  v_add3_u32 v7, v21, v22, s35")
    e("  v_lshlrev_b32 v8, 4, v1")
    e("  s_mov_b32 s36, 0")
    e("L1_tr_loop:")
    e("  s_mul_i32 s37, s18, 40960")
    for q in range(5):
        e(f"  s_add_u32 m0, s35, {q * 1024}")
        e("  s_nop 0")
        e(f"  buffer_load_dwordx4 v{2 + q}, s[20:23], s37 offen lds")
    e("  s_waitcnt vmcnt(0)")
    for t in range(5):
        for h in range(2):
            r = 24 + t * 4 + h * 2
            e(f"  ds_read_b64_tr_b16 v[{r}:{r+1}], v7 offset:{h * 2560 + t * 32}")
    e(f"  s_mul_i32 s38, s32, {5 * KB2}")
    e("  s_add_u32 s38, s38, s18")
    e("  s_lshl_b32 s38, s38, 10")
    e("  s_waitcnt lgkmcnt(0)")
    for t in range(5):
        r = 24 + t * 4
        e(f"  s_add_u32 s39, s38, {WDT_OFF + t * KB2 * 1024}")
        e(f"  buffer_store_dwordx4 v[{r}:{r+3}], v8, s[28:31], s39 offen {STFLAG}")
    e("  s_waitcnt vmcnt(0)")
    e("  s_add_u32 s18, s18, 40")
    e(f"  s_cmp_lt_u32 s18, {KB2}")
    e("  s_cbranch_scc1 L1_tr_loop")
    wg_times(40, "L1_wt2", 0)
    e("L1_end:")
    e("  s_endpgm")


def k2():
    DEPTH = 4
    NB = 14
    ACC = 16
    def acc(tn, a): return ACC + (a * 5 + tn) * 4
    RING = 96
    def hf(slot, a): return RING + slot * 36 + a * 4
    def wfr(slot, tn): return RING + slot * 36 + 16 + tn * 4

    e("standalone__geglu_ffn__prompt_k2_kernel:")
    e("  s_cmp_ge_u32 s2, 256")
    e("  s_cbranch_scc1 L2_end")
    stamp_reset()
    if INSTR: e("  s_memrealtime s[62:63]")
    stamp()
    e("  s_load_dwordx2 s[4:5], s[0:1], 32")
    e("  s_load_dwordx2 s[6:7], s[0:1], 48")
    e("  v_lshrrev_b32 v2, 6, v0")
    e("  v_and_b32 v1, 63, v0")
    e("  s_and_b32 s14, s2, 7")
    e("  s_lshr_b32 s15, s2, 3")
    e("  v_readfirstlane_b32 s32, v2")
    e("  s_and_b32 s16, s14, 1")
    e("  s_lshl_b32 s16, s16, 2")
    e("  s_and_b32 s17, s15, 3")
    e("  s_add_u32 s16, s16, s17")
    e("  s_lshr_b32 s17, s14, 1")
    e("  s_lshl_b32 s17, s17, 3")
    e("  s_lshr_b32 s18, s15, 2")
    e("  s_add_u32 s17, s17, s18")
    e("  s_mul_i32 s18, s32, 14")
    e("  s_cmp_eq_u32 s32, 3")
    e("  s_cselect_b32 s19, 1, 0")
    e("  s_sub_u32 s18, s18, s19")
    for a in range(4):
        e(f"  s_add_u32 s19, s32, {a}")
        e("  s_and_b32 s19, s19, 3")
        e("  s_lshl_b32 s20, s17, 2")
        e("  s_add_u32 s19, s19, s20")
        e(f"  s_mul_i32 s19, s19, {KB2}")
        e("  s_add_u32 s19, s19, s18")
        e(f"  s_lshl_b32 s{40 + a}, s19, 10")
    for tn in range(5):
        e("  s_mul_i32 s19, s16, 5")
        e(f"  s_add_u32 s19, s19, {tn}")
        e(f"  s_mul_i32 s19, s19, {KB2}")
        e("  s_add_u32 s19, s19, s18")
        e("  s_lshl_b32 s19, s19, 10")
        e(f"  s_add_u32 s{44 + tn}, s19, {WDT_OFF}")
    e("  v_lshlrev_b32 v3, 4, v1")
    e("  s_waitcnt lgkmcnt(0)")
    e("  s_mov_b32 s8, s6")
    e("  s_and_b32 s9, s7, 0xffff")
    e(f"  s_mov_b32 s10, {WS_USED}")
    e("  s_mov_b32 s11, 0x00020000")
    e("  s_mov_b32 s24, s4")
    e("  s_and_b32 s25, s5, 0xffff")
    e(f"  s_mov_b32 s26, {M * D * 2}")
    e("  s_mov_b32 s27, 0x00020000")

    def loads(b):
        slot = b % DEPTH
        L = []
        pre = []
        if b == NB - 1:
            pre.append("  s_cmp_lt_u32 s32, 2")
            pre.append("  s_cselect_b32 s50, s50, 0x40000000")
        for tn in range(5):
            r = wfr(slot, tn)
            L.append(f"  s_add_u32 s{52 + (tn & 1)}, s{44 + tn}, s50")
            L.append(f"  buffer_load_dwordx4 v[{r}:{r+3}], v3, s[8:11], s{52 + (tn & 1)} offen")
        for a in range(4):
            r = hf(slot, a)
            L.append(f"  s_add_u32 s{52 + (a & 1)}, s{40 + a}, s50")
            L.append(f"  buffer_load_dwordx4 v[{r}:{r+3}], v3, s[8:11], s{52 + (a & 1)} offen")
        post = ["  s_add_u32 s50, s50, 1024", "  s_cmp_eq_u32 s50, s51", "  s_cselect_b32 s50, 0, s50"]
        return pre, L, post

    e("  s_cmp_lt_u32 s32, 2")
    e("  s_cselect_b32 s51, 14, 13")
    e("  s_lshl_b32 s51, s51, 10")
    if ROT:
        e("  s_and_b32 s50, s15, 3")
        e("  s_mul_i32 s50, s50, 3")
        e("  s_lshr_b32 s52, s15, 2")
        e("  s_mul_i32 s52, s52, 5")
        e("  s_add_u32 s50, s50, s52")
        for _ in range(3):
            e("  s_cmp_ge_u32 s50, 13")
            e("  s_cselect_b32 s52, 13, 0")
            e("  s_sub_u32 s50, s50, s52")
        e("  s_lshl_b32 s50, s50, 10")
    else:
        e("  s_mov_b32 s50, 0")
    for b in range(DEPTH):
        pre, L, post = loads(b)
        for l in pre + L + post: e(l)
    for i in range(80):
        e(f"  v_mov_b32 v{ACC + i}, 0")
    for a in range(1, 4):
        e(f"  s_add_u32 s19, s32, {a}")
        e("  s_and_b32 s19, s19, 3")
        e("  s_mul_i32 s19, s19, 15360")
        e(f"  s_add_u32 s19, s19, {(a - 1) * 5120}")
        e(f"  v_add_u32 v{3 + a}, s19, v3")
    e("  s_mul_i32 s19, s32, 15360")
    e("  v_add_u32 v7, s19, v3")

    for b in range(NB):
        slot = b % DEPTH
        nout = (min(b + DEPTH - 1, NB - 1) - b) * 9
        e(f"  s_waitcnt vmcnt({nout})")
        if b % 2 == 0: stamp()
        mf = []
        for a in range(4):
            for tn in range(5):
                c = acc(tn, a); w = wfr(slot, tn); h = hf(slot, a)
                mf.append(f"  v_mfma_f32_16x16x32_bf16 v[{c}:{c+3}], v[{w}:{w+3}], v[{h}:{h+3}], v[{c}:{c+3}]")
        for l in mf: e(l)
        if b + DEPTH < NB:
            pre, L, post = loads(b + DEPTH)
            for l in pre + L + post: e(l)
    stamp()
    e("  s_nop 7")
    for a in range(1, 4):
        for tn in range(5):
            c = acc(tn, a)
            e(f"  ds_write_b128 v{3 + a}, v[{c}:{c+3}] offset:{tn * 1024}")
    e("  s_waitcnt lgkmcnt(0)")
    e("  s_barrier")
    for r in range(3):
        for tn in range(5):
            t = RING + (r * 5 + tn) * 4
            e(f"  ds_read_b128 v[{t}:{t+3}], v7 offset:{r * 5120 + tn * 1024}")
    e("  v_and_b32 v8, 15, v1")
    e("  v_lshrrev_b32 v9, 4, v1")
    e("  s_lshl_b32 s19, s17, 6")
    e("  s_lshl_b32 s20, s32, 4")
    e("  s_add_u32 s19, s19, s20")
    e("  v_add_u32 v8, s19, v8")
    e("  v_mul_u32_u24 v8, 1280, v8")
    e("  s_mul_i32 s19, s16, 160")
    e("  v_add_u32 v8, s19, v8")
    e("  v_and_b32 v10, 1, v9")
    e("  v_lshlrev_b32 v10, 5, v10")
    e("  v_lshrrev_b32 v11, 1, v9")
    e("  v_lshl_add_u32 v10, v11, 4, v10")
    e("  v_add_u32 v10, v8, v10")
    e("  v_lshl_add_u32 v11, v9, 3, v8")
    e("  s_waitcnt lgkmcnt(0)")
    for tn in range(5):
        c = acc(tn, 0)
        for r in range(3):
            t = RING + (r * 5 + tn) * 4
            for i in range(4):
                e(f"  v_add_f32 v{c + i}, v{c + i}, v{t + i}")
    P = 200
    for tn in range(5):
        c = acc(tn, 0)
        e(f"  v_cvt_pk_bf16_f32 v{P + tn * 2}, v{c}, v{c + 1}")
        e(f"  v_cvt_pk_bf16_f32 v{P + tn * 2 + 1}, v{c + 2}, v{c + 3}")
    e("  s_nop 1")
    for p in range(2):
        r = P + p * 4
        e(f"  v_permlane16_swap_b32 v{r}, v{r + 2}")
        e(f"  v_permlane16_swap_b32 v{r + 1}, v{r + 3}")
    e("  s_nop 1")
    for p in range(2):
        r = P + p * 4
        e(f"  buffer_store_dwordx4 v[{r}:{r+3}], v10, s[24:27], 0 offen offset:{p * 64}")
    e(f"  buffer_store_dwordx2 v[{P + 8}:{P + 9}], v11, s[24:27], 0 offen offset:128")
    stamp()
    if INSTR: e("  s_waitcnt vmcnt(0)")
    stamp()
    stamp_flush(220, "L2_dbg")
    wg_times(220, "L2_wt", 1)
    e("L2_end:")
    e("  s_endpgm")


HEADER = """; Kernarg layout for this problem (56 bytes, ptrs only, base s[0:1]):
; @launch kernel=standalone__geglu_ffn__prompt_k1_kernel grid=(256,1,1) block=(512,1,1) lds=147456
; @launch kernel=standalone__geglu_ffn__prompt_k2_kernel grid=(256,1,1) block=(256,1,1) lds=61440
.amdgcn_target "amdgcn-amd-amdhsa--gfx950"
.text
"""

def kd(name, vgpr, sgpr=102):
    acc = (vgpr + 3) // 4 * 4
    return f""".amdhsa_kernel {name}
  .amdhsa_next_free_vgpr {vgpr}
  .amdhsa_next_free_sgpr {sgpr}
  .amdhsa_accum_offset {acc}
  .amdhsa_group_segment_fixed_size 0
  .amdhsa_kernarg_size 56
  .amdhsa_user_sgpr_count 2
  .amdhsa_user_sgpr_kernarg_segment_ptr 1
  .amdhsa_system_sgpr_workgroup_id_x 1
  .amdhsa_float_denorm_mode_32 3
.end_amdhsa_kernel
"""

def main():
    e(HEADER.rstrip("\n"))
    for name, fn in (("standalone__geglu_ffn__prompt_k1_kernel", k1), ("standalone__geglu_ffn__prompt_k2_kernel", k2)):
        e(f".globl {name}")
        e(".p2align 8")
        e(f".type {name},@function")
        fn()
    e('.section .rodata,"a"')
    e(".p2align 6")
    e(kd("standalone__geglu_ffn__prompt_k1_kernel", 200))
    e(".p2align 6")
    e(kd("standalone__geglu_ffn__prompt_k2_kernel", 240))
    path = sys.argv[1] if len(sys.argv) > 1 else "standalone__geglu_ffn__prompt.s"
    open(path, "w").write("\n".join(out) + "\n")

main()
```

```python
import sys

M, D, F = 2048, 640, 1728
KB2 = F // 32
H_BYTES = M * F * 2
WDT_OFF = 8 << 20
WDT_BYTES = F * D * 2
WS_USED = WDT_OFF + WDT_BYTES

out = []
import os
INSTR = int(os.environ.get("INSTR", "0"))
DBG_WG = int(os.environ.get("DBG_WG", "0"))
STFLAG = os.environ.get("STFLAG", "sc1")
ROT = int(os.environ.get("ROT", "0"))
EXP = os.environ.get("EXP", "")
PF = int(os.environ.get("PF", "0"))
PW = int(os.environ.get("PW", "0"))
LD1 = os.environ.get("LD1", "")
V4 = int(os.environ.get("V4", "0"))
LD2 = os.environ.get("LD2", "")
def e(s=""):
    out.append(s)
_nst = [0]
def stamp_reset():
    _nst[0] = 0
def stamp():
    if not INSTR: return
    i = _nst[0]; _nst[0] += 1
    e(f"  s_memtime s[{64 + 2*i}:{65 + 2*i}]")
def wg_times(vt, label, kidx):
    if not INSTR: return
    e("  s_memrealtime s[60:61]")
    e("  s_cmp_lg_u32 s32, 0")
    e(f"  s_cbranch_scc1 {label}")
    e("  s_load_dwordx2 s[96:97], s[0:1], 48")
    e("  s_waitcnt lgkmcnt(0)")
    e("  s_and_b32 s97, s97, 0xffff")
    e("  s_mov_b32 s98, 0x4000000")
    e("  s_mov_b32 s99, 0x00020000")
    e("  s_lshl_b32 s59, s2, 3")
    e(f"  s_add_u32 s59, s59, {(32 << 20) + kidx * 65536}")
    e(f"  v_mov_b32 v{vt}, 0")
    e(f"  v_mov_b32 v{vt + 2}, s62")
    e(f"  v_mov_b32 v{vt + 3}, s60")
    e(f"  buffer_store_dwordx2 v[{vt + 2}:{vt + 3}], v{vt}, s[96:99], s59 offen")
    e(f"{label}:")
def stamp_flush(vt, label):
    if not INSTR: return
    n = _nst[0]
    e(f"  s_memrealtime s[{64 + 2*n}:{65 + 2*n}]")
    e(f"  s_cmp_lg_u32 s2, {DBG_WG}")
    e(f"  s_cbranch_scc1 {label}")
    e("  s_cmp_lg_u32 s32, 0")
    e(f"  s_cbranch_scc1 {label}")
    e("  s_load_dwordx2 s[96:97], s[0:1], 40")
    e("  s_waitcnt lgkmcnt(0)")
    e("  s_and_b32 s97, s97, 0xffff")
    e("  s_mov_b32 s98, 256")
    e("  s_mov_b32 s99, 0x00020000")
    e(f"  v_mov_b32 v{vt}, 0")
    for i in range(n + 1):
        e(f"  v_mov_b32 v{vt + 1}, s{64 + 2*i}")
        e(f"  buffer_store_dword v{vt + 1}, v{vt}, s[96:99], 0 offen offset:{4 * i}")
    e(f"  v_mov_b32 v{vt + 1}, s62")
    e(f"  buffer_store_dword v{vt + 1}, v{vt}, s[96:99], 0 offen offset:{4 * (n + 1)}")
    e(f"{label}:")

def interleave(main, others, lead=0):
    res = []
    others = list(others)
    res += others[:lead]
    others = others[lead:]
    n, k = len(main), len(others)
    if n == 0:
        return res + others
    j = 0
    for i, m in enumerate(main):
        res.append(m)
        tgt = ((i + 1) * k) // n
        while j < tgt:
            res.append(others[j]); j += 1
    res += others[j:]
    return res

STAGE = 49152
NST = D // 64

def k1():
    ACC = 40
    def acc(mat, tt, a): return ACC + ((mat * 2 + tt) * 4 + a) * 4
    FR = {0: 104, 1: 136}
    def xf(s, a): return FR[s] + a * 4
    def wf(s, mat, tt): return FR[s] + 16 + (mat * 2 + tt) * 4
    vXe, vXo, vWe, vWo = 2, 3, 4, 5
    def vRXb(s): return 8 + s
    def vRWb(tt): return 10 + tt
    def vRX(s): return 12 + s
    def vRW(tt): return 14 + tt

    e("standalone__geglu_ffn__prompt_k1_kernel:")
    e("  s_cmp_ge_u32 s2, 256")
    e("  s_cbranch_scc1 L1_end")
    stamp_reset()
    if INSTR: e("  s_memrealtime s[62:63]")
    stamp()
    e("  s_load_dwordx8 s[4:11], s[0:1], 0")
    e("  s_load_dwordx2 s[12:13], s[0:1], 48")
    e("  v_lshrrev_b32 v20, 6, v0")
    e("  v_and_b32 v1, 63, v0")
    e("  s_and_b32 s14, s2, 7")
    e("  s_lshr_b32 s15, s2, 3")
    e("  v_readfirstlane_b32 s32, v20")
    e("  s_lshr_b32 s16, s14, 1")
    e("  s_cmp_eq_u32 s16, 3")
    e("  s_cselect_b32 s17, 24, 28")
    e("  v_lshrrev_b32 v20, 3, v1")
    e("  v_and_b32 v21, 7, v1")
    e("  v_lshrrev_b32 v22, 4, v1")
    e("  v_xor_b32 v23, v21, v22")
    e("  v_lshlrev_b32 v23, 4, v23")
    e("  v_mul_u32_u24 v24, 1280, v20")
    e("  s_mul_i32 s40, s32, 40960")
    e("  v_add3_u32 v2, v24, v23, s40")
    e("  v_xor_b32 v3, 64, v2")
    e("  v_and_b32 v23, 1, v22")
    e("  v_lshlrev_b32 v23, 1, v23")
    e("  v_xor_b32 v23, v21, v23")
    e("  v_lshlrev_b32 v23, 4, v23")
    e("  v_mul_u32_u24 v24, 3456, v20")
    e("  v_add_u32 v4, v24, v23")
    e("  v_xor_b32 v5, 64, v4")
    e("  s_and_b32 s18, s14, 1")
    e("  s_lshl_b32 s18, s18, 2")
    e("  s_and_b32 s19, s15, 3")
    e("  s_add_u32 s18, s18, s19")
    e("  s_mul_i32 s19, s16, 7")
    e("  s_lshr_b32 s33, s15, 2")
    e("  s_add_u32 s19, s19, s33")
    e("  s_and_b32 s33, s32, 1")
    e("  s_mul_i32 s34, s18, 327680")
    e("  s_lshr_b32 s35, s32, 1")
    e("  s_mul_i32 s36, s35, 55296")
    e("  s_lshl_b32 s37, s19, 7")
    e("  s_add_u32 s36, s36, s37")
    e("  s_lshl_b32 s38, s32, 12")
    e("  s_lshl_b32 s39, s33, 13")
    e("  s_lshl_b32 s40, s35, 11")
    e("  s_add_u32 s39, s39, s40")
    e("  s_add_u32 s39, s39, 32768")
    if ROT:
        if ROT == 2:
            e("  s_lshl_b32 s52, s16, 1")
            e("  s_and_b32 s53, s14, 1")
            e("  s_mul_i32 s53, s53, 5")
            e("  s_add_u32 s52, s52, s53")
        else:
            e("  s_lshr_b32 s52, s15, 2")
            e("  s_mul_i32 s52, s52, 3")
            e("  s_and_b32 s53, s15, 3")
            e("  s_lshl_b32 s53, s53, 1")
            e("  s_add_u32 s52, s52, s53")
        for _ in range(2):
            e("  s_cmp_ge_u32 s52, 10")
            e("  s_cselect_b32 s53, 10, 0")
            e("  s_sub_u32 s52, s52, s53")
        e(f"  s_mov_b32 s55, {(-9 * 128) & 0xffffffff:#x}")
        e("  s_movk_i32 s56, 128")
        e(f"  s_mov_b32 s57, {(-9 * 64 * 3456) & 0xffffffff:#x}")
        e(f"  s_mov_b32 s58, {64 * 3456}")
        e("  s_lshl_b32 s53, s52, 7")
        e("  s_add_u32 s34, s34, s53")
        e(f"  s_mul_i32 s53, s52, {64 * 3456}")
        e("  s_add_u32 s36, s36, s53")
    e(f"  s_mov_b32 s22, {M * D * 2}")
    e("  s_mov_b32 s23, 0x00020000")
    e(f"  s_mov_b32 s26, {D * F * 2}")
    e("  s_mov_b32 s27, 0x00020000")
    e("  s_cmp_eq_u32 s33, 0")
    e("  s_waitcnt lgkmcnt(0)")
    e("  s_cselect_b32 s24, s6, s8")
    e("  s_cselect_b32 s25, s7, s9")
    e("  s_mov_b32 s20, s4")
    e("  s_and_b32 s21, s5, 0xffff")
    e("  s_and_b32 s25, s25, 0xffff")
    PD = int(os.environ.get("PD", "5"))
    NPF = 2 * (PD - 2) if PF else 0
    def pf_setup():
        if not PF: return
        e("  s_lshr_b32 s42, s17, 2")
        e("  s_mul_i32 s42, s42, s32")
        e("  s_lshr_b32 s43, s15, 2")
        e("  s_add_u32 s42, s42, s43")
        e("  s_mul_i32 s43, s42, 10240")
        e("  s_mul_i32 s44, s32, 40960")
        e("  s_sub_u32 s43, s43, s44")
        e("  s_add_u32 s60, s34, s43")
        e("  s_cmp_lt_u32 s42, 32")
        e("  s_cselect_b32 s60, s60, 0x40000000")
        e("  s_and_b32 s42, s15, 3")
        e("  s_lshl_b32 s42, s42, 1")
        e("  s_add_u32 s42, s42, s35")
        e(f"  s_mul_i32 s42, s42, {8 * 3456}")
        e("  s_add_u32 s42, s42, s37")
        e(f"  s_add_u32 s61, s42, {2 * 64 * 3456}")
        e("  s_cmp_lt_u32 s32, 4")
        e("  s_cselect_b32 s61, s61, 0x40000000")
    def pf_stage():
        if not PF: return []
        return [f"  buffer_load_dwordx4 v[192:195], v{vXe}, s[20:23], s60 offen",
                f"  buffer_load_dwordx4 v[196:199], v{vWe}, s[24:27], s61 offen",
                "  s_add_u32 s60, s60, 128", f"  s_add_u32 s61, s61, {64 * 3456}"]
    def prefetch():
        pf_setup()
        for st in range(2, PD):
            for l in pf_stage(): e(l)
    TLB = int(os.environ.get("TLB", "0"))
    if TLB:
        e("  v_lshlrev_b32 v6, 12, v1")
        e("  s_lshl_b32 s42, s15, 2")
        e("  s_add_u32 s42, s42, s35")
        e("  s_mul_i32 s43, s42, 6554")
        e("  s_lshr_b32 s43, s43, 16")
        e("  s_mul_i32 s43, s43, 10")
        e("  s_sub_u32 s42, s42, s43")
        e("  s_lshl_b32 s42, s42, 18")
        e("  buffer_load_dword v104, v6, s[20:23], s42 offen")
        e("  buffer_load_dword v105, v6, s[24:27], s42 offen")
    WPF = int(os.environ.get("WPF", "0"))
    if WPF:
        e("  v_lshlrev_b32 v6, 4, v1")
        e("  s_lshl_b32 s43, s15, 2")
        e("  s_add_u32 s43, s43, s35")
        e(f"  s_mul_i32 s43, s43, {5 * 3456}")
        e("  s_mul_i32 s44, s16, 896")
        e("  s_add_u32 s43, s43, s44")
        for i in range(5):
            e(f"  buffer_load_dwordx4 v[{124 + 4*i}:{127 + 4*i}], v6, s[24:27], s43 offen")
            e("  s_add_u32 s43, s43, 3456")
        if WPF == 2: e("  s_waitcnt vmcnt(0)")
        stamp()
    XPF = int(os.environ.get("XPF", "0"))
    if XPF:
        e("  v_lshlrev_b32 v6, 4, v1")
        e("  s_and_b32 s42, s14, 1")
        e("  s_mul_i32 s42, s42, 1310720")
        e("  s_lshl_b32 s43, s15, 3")
        e("  s_add_u32 s43, s43, s32")
        e("  s_mul_i32 s43, s43, 5120")
        e("  s_add_u32 s42, s42, s43")
        for i in range(5):
            if i == 4: e("  s_add_u32 s42, s42, 4096")
            e(f"  buffer_load_dwordx4 v[{104 + 4*i}:{107 + 4*i}], v6, s[20:23], s42 offen offset:{(i & 3) * 1024}")
        if XPF == 2: e("  s_waitcnt vmcnt(0)")
        stamp()
    if PW:
        e("  s_cmp_eq_u32 s32, 8")
        e("  s_cbranch_scc1 L1_pfwave")
    if "pfwait" in EXP:
        stamp()
        e("  s_waitcnt vmcnt(0)")
        stamp()
        e("  s_barrier")
        stamp()
    e("  s_cmp_ge_u32 s15, s17")
    e("  s_cbranch_scc1 L1_transposer")

    def dma(wb):
        L = []
        for q in range(4):
            L.append(f"  s_add_u32 m0, s{50 + 0}, {q * 1024}")
            L.append(f"  s_add_u32 s{42 + (q & 1)}, s34, {q * 10240}")
            L.append(f"  buffer_load_dwordx4 v{vXo if q & 1 else vXe}, s[20:23], s{42 + (q & 1)} offen {LD1} lds")
        for o in range(2):
            L.append(f"  s_add_u32 m0, s{51}, {o * 1024}")
            L.append(f"  s_add_u32 s{42 + o}, s36, {8 * o * 3456}")
            L.append(f"  buffer_load_dwordx4 v{vWo if o else vWe}, s[24:27], s{42 + o} offen {LD1} lds")
        return L
    def dma_pre(wb):
        return [f"  s_add_u32 s50, s38, {wb}", f"  s_add_u32 s51, s39, {wb}"]
    def dma_post():
        if not ROT:
            return ["  s_add_u32 s34, s34, 128", f"  s_add_u32 s36, s36, {64 * 3456}"]
        return ["  s_add_u32 s52, s52, 1", "  s_cmp_eq_u32 s52, 10",
                "  s_cselect_b32 s52, 0, s52",
                "  s_cselect_b32 s53, s55, s56",
                "  s_cselect_b32 s54, s57, s58",
                "  s_add_u32 s34, s34, s53", "  s_add_u32 s36, s36, s54"]

    for st in range(2):
        for l in dma_pre(st * STAGE) + dma(0) + dma_post(): e(l)
    if "pfirst" not in EXP: prefetch()

    e("  s_mov_b32 s28, s12")
    e("  s_and_b32 s29, s13, 0xffff")
    e(f"  s_mov_b32 s30, {WS_USED}")
    e("  s_mov_b32 s31, 0x00020000")
    e("  s_and_b32 s40, s32, 3")
    e("  s_lshr_b32 s41, s32, 2")
    e("  v_and_b32 v20, 15, v1")
    e("  v_lshrrev_b32 v21, 4, v1")
    e("  v_lshrrev_b32 v22, 1, v20")
    e("  v_xor_b32 v22, v21, v22")
    e("  v_lshlrev_b32 v22, 4, v22")
    e("  v_lshlrev_b32 v23, 7, v20")
    e("  s_lshl_b32 s42, s40, 13")
    e(f"  v_add3_u32 v{vRXb(0)}, v22, v23, s42")
    e(f"  v_xor_b32 v{vRXb(1)}, 64, v{vRXb(0)}")
    e("  v_bfe_u32 v22, v1, 2, 2")
    e("  v_and_b32 v23, 3, v1")
    e("  v_lshrrev_b32 v24, 1, v22")
    e("  v_and_b32 v25, 1, v21")
    e("  v_lshl_add_u32 v24, v25, 1, v24")
    e("  v_lshl_add_u32 v25, v21, 3, v22")
    e("  v_lshlrev_b32 v25, 7, v25")
    e("  v_lshl_add_u32 v25, v23, 3, v25")
    e("  v_add_u32 v25, 32768, v25")
    e("  s_lshl_b32 s42, s41, 1")
    for tt in range(2):
        e(f"  s_add_u32 s43, s42, {tt}")
        e("  v_xor_b32 v26, s43, v24")
        e(f"  v_lshl_add_u32 v{vRWb(tt)}, v26, 5, v25")
    for i in range(64):
        e(f"  v_mov_b32 v{ACC + i}, 0")
    for i in range(32):
        e(f"  v_mov_b32 v{FR[1] + i}, 0")
    e(f"  s_mov_b32 s47, {2 * STAGE}")
    e("  s_mov_b32 s48, 0")
    e("  s_mov_b32 s49, 0")

    def reads(s):
        L = []
        if "nords" in EXP: return L
        for mat in range(2):
            for tt in range(2):
                for h in range(2):
                    r = wf(s, mat, tt) + 2 * h
                    L.append(f"  ds_read_b64_tr_b16 v[{r}:{r+1}], v{vRW(tt)} offset:{mat * 8192 + s * 4096 + h * 512}")
        for a in range(4):
            r = xf(s, a)
            L.append(f"  ds_read_b128 v[{r}:{r+3}], v{vRX(s)} offset:{a * 2048}")
        return L

    def mfmas(s):
        L = []
        for a in range(4):
            for mat in range(2):
                for tt in range(2):
                    c = acc(mat, tt, a)
                    w = wf(s, mat, tt); x = xf(s, a)
                    L.append(f"  v_mfma_f32_16x16x32_bf16 v[{c}:{c+3}], v[{w}:{w+3}], v[{x}:{x+3}], v[{c}:{c+3}]")
        return L

    stamp()
    late_pf = NPF
    PFI = 2 if PF else 0
    e(f"  s_waitcnt vmcnt({6 + late_pf})")
    def body(endwait):
        if "nobar" not in EXP: e("  s_barrier")
        for s_ in range(2):
            e(f"  v_add_u32 v{vRX(s_)}, s48, v{vRXb(s_)}")
            e(f"  v_add_u32 v{vRW(s_)}, s48, v{vRWb(s_)}")
        pre = dma_pre("s47") + [f"  s_cmp_lt_u32 s49, {NST - 2}",
                                "  s_cselect_b32 s34, s34, 0x40000000",
                                "  s_cselect_b32 s36, s36, 0x40000000"]
        dm = dma(0)
        if "nodma" in EXP: dm = []
        if "spread" in EXP:
            oth = reads(0) + pre + dm[:9]
            dmB = dm[9:] + dma_post()
        else:
            pfl = []
            if PF:
                pfl = [f"  s_cmp_lt_u32 s49, {NST - PD}", "  s_cselect_b32 s60, s60, 0x40000000",
                       "  s_cselect_b32 s61, s61, 0x40000000"] + pf_stage()
            oth = reads(0) + pre + dm + dma_post()
            dmB = pfl
        for l in interleave(mfmas(1), oth, lead=(12 if "front" in EXP else 4)): e(l)
        e("  s_waitcnt lgkmcnt(0)")
        post = [f"  s_add_u32 s47, s47, {STAGE}", f"  s_cmp_eq_u32 s47, {3 * STAGE}", "  s_cselect_b32 s47, 0, s47",
                f"  s_add_u32 s48, s48, {STAGE}", f"  s_cmp_eq_u32 s48, {3 * STAGE}", "  s_cselect_b32 s48, 0, s48",
                "  s_add_u32 s49, s49, 1"]
        for l in interleave(mfmas(0), reads(1) + dmB + post, lead=(12 if "front" in EXP else 0)): e(l)
        e(f"  s_cmp_lt_u32 s49, {NST}")
        e(f"  s_waitcnt vmcnt({endwait}) lgkmcnt(0)")
    if late_pf:
        body(6 + late_pf + PFI)
    e("  .p2align 6")
    e("L1_loop:")
    body(6 + 2 * PFI)
    e("  s_cbranch_scc1 L1_loop")
    for l in mfmas(1): e(l)
    stamp()
    e("  s_lshl_b32 s42, s18, 4")
    e("  s_lshl_b32 s43, s40, 2")
    e("  s_add_u32 s42, s42, s43")
    e(f"  s_mul_i32 s42, s42, {KB2}")
    e("  s_lshl_b32 s43, s19, 1")
    e("  s_add_u32 s42, s42, s43")
    e("  s_add_u32 s42, s42, s41")
    e("  s_lshl_b32 s42, s42, 10")
    e("  v_lshlrev_b32 v20, 4, v1")
    import math, struct
    c0 = -2.0 * math.sqrt(2.0 / math.pi) * math.log2(math.e)
    c1 = c0 * 0.044715
    def f2u(x): return struct.unpack("<I", struct.pack("<f", x))[0]
    e(f"  v_mov_b32 v16, {f2u(c0):#x}")
    e(f"  v_mov_b32 v17, {f2u(c0):#x}")
    e(f"  v_mov_b32 v18, {f2u(c1):#x}")
    e(f"  v_mov_b32 v19, {f2u(c1):#x}")
    e("  s_nop 3")
    for a in range(4):
        dst = 24 + (a & 1) * 4
        pairs = [(tt, p) for tt in range(2) for p in range(2)]
        T = [104 + 4 * i for i in range(4)]
        def G(i): tt, p = pairs[i]; return acc(0, tt, a) + 2 * p
        def U(i): tt, p = pairs[i]; return acc(1, tt, a) + 2 * p
        for i in range(4): e(f"  v_pk_mul_f32 v[{T[i]}:{T[i]+1}], v[{G(i)}:{G(i)+1}], v[{G(i)}:{G(i)+1}]")
        for i in range(4): e(f"  v_pk_fma_f32 v[{T[i]}:{T[i]+1}], v[{T[i]}:{T[i]+1}], v[18:19], v[16:17]")
        for i in range(4): e(f"  v_pk_mul_f32 v[{T[i]}:{T[i]+1}], v[{T[i]}:{T[i]+1}], v[{G(i)}:{G(i)+1}]")
        for i in range(4):
            e(f"  v_exp_f32 v{T[i]}, v{T[i]}")
            e(f"  v_exp_f32 v{T[i]+1}, v{T[i]+1}")
        for i in range(4): e(f"  v_pk_mul_f32 v[{T[i]+2}:{T[i]+3}], v[{G(i)}:{G(i)+1}], v[{U(i)}:{U(i)+1}]")
        for i in range(4): e(f"  v_pk_add_f32 v[{T[i]}:{T[i]+1}], v[{T[i]}:{T[i]+1}], 1.0 op_sel_hi:[1,0]")
        for i in range(4):
            e(f"  v_rcp_f32 v{T[i]}, v{T[i]}")
            e(f"  v_rcp_f32 v{T[i]+1}, v{T[i]+1}")
        e("  s_nop 0")
        for i in range(4): e(f"  v_pk_mul_f32 v[{T[i]}:{T[i]+1}], v[{T[i]}:{T[i]+1}], v[{T[i]+2}:{T[i]+3}]")
        for i in range(4): e(f"  v_cvt_pk_bf16_f32 v{dst + i}, v{T[i]}, v{T[i]+1}")
        e(f"  s_add_u32 s43, s42, {a * KB2 * 1024}")
        e(f"  buffer_store_dwordx4 v[{dst}:{dst+3}], v20, s[28:31], s43 offen {STFLAG}")
    stamp()
    if INSTR: e("  s_waitcnt vmcnt(0)")
    stamp()
    stamp_flush(120, "L1_dbg")
    wg_times(120, "L1_wt", 0)
    e("  s_endpgm")

    if PW:
        e("L1_pfwave:")
        e("  s_cmp_ge_u32 s15, s17")
        e("  s_cbranch_scc1 L1_end")
        e("  s_mov_b32 s24, s6")
        e("  s_and_b32 s25, s7, 0xffff")
        e("  s_mov_b32 s56, s8")
        e("  s_and_b32 s57, s9, 0xffff")
        e(f"  s_mov_b32 s58, {D * F * 2}")
        e("  s_mov_b32 s59, 0x00020000")
        e("  v_lshrrev_b32 v20, 3, v1")
        e("  v_and_b32 v21, 7, v1")
        e("  v_lshlrev_b32 v21, 4, v21")
        e("  v_mad_u32_u24 v6, v20, s101, v21") if False else None
        e("  v_mul_u32_u24 v6, 1280, v20")
        e("  v_add_u32 v6, v6, v21")
        e("  v_mul_u32_u24 v7, 3456, v20")
        e("  v_add_u32 v7, v7, v21")
        e("  s_lshr_b32 s47, s17, 2")
        e("  s_lshr_b32 s48, s15, 2")
        for i in range(5):
            e("  s_mul_i32 s49, s48, 10240")
            e(f"  s_add_u32 s{42 + i}, s34, s49")
            e(f"  s_add_u32 s{42 + i}, s{42 + i}, 256")
            e("  s_cmp_lt_u32 s48, 32")
            e(f"  s_cselect_b32 s{42 + i}, s{42 + i}, 0x40000000")
            e("  s_add_u32 s48, s48, s47")
        e("  s_and_b32 s50, s15, 3")
        e(f"  s_mul_i32 s50, s50, {16 * 3456}")
        e("  s_add_u32 s50, s50, s37")
        e(f"  s_add_u32 s50, s50, {128 * 3456}")
        def pstage():
            for i in range(5):
                e(f"  buffer_load_dwordx4 v[8:11], v6, s[20:23], s{42 + i} offen")
                e(f"  s_add_u32 s{42 + i}, s{42 + i}, 128")
            e(f"  s_add_u32 s51, s50, {8 * 3456}")
            e("  buffer_load_dwordx4 v[12:15], v7, s[24:27], s50 offen")
            e("  buffer_load_dwordx4 v[12:15], v7, s[56:59], s50 offen")
            e("  buffer_load_dwordx4 v[12:15], v7, s[24:27], s51 offen")
            e("  buffer_load_dwordx4 v[12:15], v7, s[56:59], s51 offen")
            e(f"  s_add_u32 s50, s50, {64 * 3456}")
        PWA = int(os.environ.get("PWA", "4"))
        nxt = 2
        for it in range(NST):
            n = PWA if it == 0 else 1
            for _ in range(n):
                if nxt < NST:
                    pstage(); nxt += 1
            e("  s_barrier")
        e("  s_endpgm")
    e("L1_transposer:")
    e("  s_mov_b32 s28, s12")
    e("  s_and_b32 s29, s13, 0xffff")
    e(f"  s_mov_b32 s30, {WS_USED}")
    e("  s_mov_b32 s31, 0x00020000")
    e("  s_lshl_b32 s18, s14, 2")
    e("  s_add_u32 s18, s18, s15")
    e("  s_sub_u32 s18, s18, 28")
    e("  s_lshl_b32 s19, s14, 3")
    e("  s_add_u32 s19, s19, s15")
    e("  s_sub_u32 s19, s19, 48")
    e("  s_cmp_lt_u32 s14, 6")
    e("  s_cselect_b32 s18, s18, s19")
    e("  s_mov_b32 s20, s10")
    e("  s_and_b32 s21, s11, 0xffff")
    e(f"  s_mov_b32 s22, {F * D * 2}")
    e("  s_mov_b32 s23, 0x00020000")
    e("  s_mul_i32 s33, s32, 160")
    e("  s_mov_b32 s34, 52429")
    for q in range(5):
        e(f"  v_add_u32 v20, {q * 64}, v1")
        e("  v_mul_lo_u32 v21, v20, s34")
        e("  v_lshrrev_b32 v21, 19, v21")
        e("  v_mul_u32_u24 v22, 10, v21")
        e("  v_sub_u32 v22, v20, v22")
        e("  v_mul_u32_u24 v21, 1280, v21")
        e("  v_lshlrev_b32 v22, 4, v22")
        e(f"  v_add3_u32 v{2 + q}, v21, v22, s33")
    e("  v_lshrrev_b32 v21, 2, v1")
    e("  v_mul_u32_u24 v21, 160, v21")
    e("  v_and_b32 v22, 3, v1")
    e("  v_lshlrev_b32 v22, 3, v22")
    e("  s_mul_i32 s35, s32, 5120")
    e("  v_add3_u32 v7, v21, v22, s35")
    e("  v_lshlrev_b32 v8, 4, v1")
    e("  s_mov_b32 s36, 0")
    e("L1_tr_loop:")
    e("  s_mul_i32 s37, s18, 40960")
    for q in range(5):
        e(f"  s_add_u32 m0, s35, {q * 1024}")
        e("  s_nop 0")
        e(f"  buffer_load_dwordx4 v{2 + q}, s[20:23], s37 offen {LD1} lds")
    e("  s_waitcnt vmcnt(0)")
    for t in range(5):
        for h in range(2):
            r = 24 + t * 4 + h * 2
            e(f"  ds_read_b64_tr_b16 v[{r}:{r+1}], v7 offset:{h * 2560 + t * 32}")
    e(f"  s_mul_i32 s38, s32, {5 * KB2}")
    e("  s_add_u32 s38, s38, s18")
    e("  s_lshl_b32 s38, s38, 10")
    e("  s_waitcnt lgkmcnt(0)")
    for t in range(5):
        r = 24 + t * 4
        e(f"  s_add_u32 s39, s38, {WDT_OFF + t * KB2 * 1024}")
        e(f"  buffer_store_dwordx4 v[{r}:{r+3}], v8, s[28:31], s39 offen {STFLAG}")
    e("  s_waitcnt vmcnt(0)")
    e("  s_add_u32 s18, s18, 40")
    e(f"  s_cmp_lt_u32 s18, {KB2}")
    e("  s_cbranch_scc1 L1_tr_loop")
    wg_times(40, "L1_wt2", 0)
    e("L1_end:")
    e("  s_endpgm")


def k1v4():
    WST = 16384; WD = 6; XD = 5
    ACC = 24
    def acc(mat, t, a): return ACC + ((mat * 4 + t) * 4 + a) * 4
    FR = {0: 152, 1: 184}
    def wf(s, mat, t): return FR[s] + (mat * 4 + t) * 4
    def xa(slot, s, a): return slot * 32 + (s * 4 + a) * 4
    vWe, vWo, vX = 2, 3, 4
    def vRWb(t): return 8 + t
    def vRW(t): return 12 + t
    e("standalone__geglu_ffn__prompt_k1_kernel:")
    e("  s_cmp_ge_u32 s2, 256")
    e("  s_cbranch_scc1 L1_end")
    stamp_reset()
    if INSTR: e("  s_memrealtime s[62:63]")
    stamp()
    e("  s_load_dwordx8 s[4:11], s[0:1], 0")
    e("  s_load_dwordx2 s[12:13], s[0:1], 48")
    e("  v_lshrrev_b32 v20, 6, v0")
    e("  v_and_b32 v1, 63, v0")
    e("  s_and_b32 s14, s2, 7")
    e("  s_lshr_b32 s15, s2, 3")
    e("  v_readfirstlane_b32 s32, v20")
    e("  s_lshr_b32 s16, s14, 1")
    e("  s_cmp_eq_u32 s16, 3")
    e("  s_cselect_b32 s17, 24, 28")
    e("  s_cmp_ge_u32 s15, s17")
    e("  s_cbranch_scc1 L1_transposer")
    e("  v_lshrrev_b32 v20, 3, v1")
    e("  v_and_b32 v21, 7, v1")
    e("  v_lshrrev_b32 v22, 4, v1")
    e("  v_and_b32 v23, 1, v22")
    e("  v_lshlrev_b32 v23, 1, v23")
    e("  v_xor_b32 v23, v21, v23")
    e("  v_lshlrev_b32 v23, 4, v23")
    e("  v_mul_u32_u24 v21, 3456, v20")
    e(f"  v_add_u32 v{vWe}, v21, v23")
    e(f"  v_xor_b32 v{vWo}, 64, v{vWe}")
    e("  v_and_b32 v20, 15, v1")
    e("  v_mul_u32_u24 v21, 1280, v20")
    e(f"  v_lshl_add_u32 v{vX}, v22, 4, v21")
    e("  s_and_b32 s18, s14, 1")
    e("  s_lshl_b32 s18, s18, 2")
    e("  s_and_b32 s19, s15, 3")
    e("  s_add_u32 s18, s18, s19")
    e("  s_mul_i32 s19, s16, 7")
    e("  s_lshr_b32 s33, s15, 2")
    e("  s_add_u32 s19, s19, s33")
    e("  s_and_b32 s33, s32, 1")
    e("  s_lshr_b32 s35, s32, 1")
    e("  s_mul_i32 s34, s18, 327680")
    e("  s_mul_i32 s40, s32, 81920")
    e("  s_add_u32 s34, s34, s40")
    e(f"  s_mul_i32 s36, s35, {32 * 3456}")
    e("  s_lshl_b32 s37, s19, 7")
    e("  s_add_u32 s36, s36, s37")
    e("  s_lshl_b32 s39, s33, 13")
    e("  s_lshl_b32 s40, s35, 12")
    e("  s_add_u32 s39, s39, s40")
    e(f"  s_mov_b32 s22, {M * D * 2}")
    e("  s_mov_b32 s23, 0x00020000")
    e(f"  s_mov_b32 s26, {D * F * 2}")
    e("  s_mov_b32 s27, 0x00020000")
    e("  s_cmp_eq_u32 s33, 0")
    e("  s_waitcnt lgkmcnt(0)")
    e("  s_cselect_b32 s24, s6, s8")
    e("  s_cselect_b32 s25, s7, s9")
    e("  s_mov_b32 s20, s4")
    e("  s_and_b32 s21, s5, 0xffff")
    e("  s_and_b32 s25, s25, 0xffff")

    def dmaW(wb):
        L = [f"  s_add_u32 s50, s39, {wb}"]
        for o in range(4):
            L.append(f"  s_add_u32 m0, s50, {o * 1024}")
            L.append(f"  s_add_u32 s{42 + (o & 1)}, s36, {8 * o * 3456}")
            L.append(f"  buffer_load_dwordx4 v{vWo if o & 1 else vWe}, s[24:27], s{42 + (o & 1)} offen lds")
        L.append(f"  s_add_u32 s36, s36, {64 * 3456}")
        return L
    def ldX(slot):
        L = []
        for a in range(4):
            L.append(f"  s_add_u32 s{44 + (a & 1)}, s34, {a * 20480}")
            for s_ in range(2):
                r = xa(slot, s_, a)
                L.append(f"  buffer_load_dwordx4 a[{r}:{r+3}], v{vX}, s[20:23], s{44 + (a & 1)} offen offset:{s_ * 64}")
        L.append("  s_add_u32 s34, s34, 128")
        return L
    for st in range(4):
        for l in dmaW(st * WST) + ldX(st): e(l)
    for l in dmaW(4 * WST): e(l)
    e("  s_mov_b32 s28, s12")
    e("  s_and_b32 s29, s13, 0xffff")
    e(f"  s_mov_b32 s30, {WS_USED}")
    e("  s_mov_b32 s31, 0x00020000")
    e("  v_lshrrev_b32 v21, 4, v1")
    e("  v_bfe_u32 v22, v1, 2, 2")
    e("  v_and_b32 v23, 3, v1")
    e("  v_lshrrev_b32 v16, 1, v22")
    e("  v_and_b32 v17, 1, v21")
    e("  v_lshl_add_u32 v16, v17, 1, v16")
    e("  v_lshl_add_u32 v17, v21, 3, v22")
    e("  v_lshlrev_b32 v17, 7, v17")
    e("  v_lshl_add_u32 v17, v23, 3, v17")
    for t in range(4):
        e(f"  v_xor_b32 v18, {t}, v16")
        e(f"  v_lshl_add_u32 v{vRWb(t)}, v18, 5, v17")
    for i in range(128):
        e(f"  v_mov_b32 v{ACC + i}, 0")
    e(f"  s_mov_b32 s47, {5 * WST}")
    e(f"  s_mov_b32 s48, {WST}")
    e("  s_mov_b32 s49, 0")

    def reads(s_, base):
        L = []
        for mat in range(2):
            for t in range(4):
                for h in range(2):
                    r = wf(s_, mat, t) + 2 * h
                    L.append(f"  ds_read_b64_tr_b16 v[{r}:{r+1}], v{base(t)} offset:{mat * 8192 + s_ * 4096 + h * 512}")
        return L
    def mfmas(s_, slot):
        L = []
        for a in range(4):
            for mat in range(2):
                for t in range(4):
                    c = acc(mat, t, a); w = wf(s_, mat, t); x = xa(slot, s_, a)
                    L.append(f"  v_mfma_f32_16x16x32_bf16 v[{c}:{c+3}], v[{w}:{w+3}], a[{x}:{x+3}], v[{c}:{c+3}]")
        return L
    stamp()
    e("  s_waitcnt vmcnt(40)")
    e("  s_barrier")
    for t in range(4): e(f"  v_mov_b32 v{vRW(t)}, v{vRWb(t)}")
    for l in reads(0, vRWb): e(l)
    e("  s_waitcnt lgkmcnt(0)")
    e("  .p2align 6")
    e("L1_loop:")
    for u in range(XD):
        oob = [f"  s_cmp_lt_u32 s49, {NST - 5}", "  s_cselect_b32 s36, s36, 0x40000000",
               f"  s_cmp_lt_u32 s49, {NST - 4}", "  s_cselect_b32 s34, s34, 0x40000000"]
        oth = reads(1, vRW) + oob + dmaW("s47") + ldX((u + 4) % XD)
        for l in interleave(mfmas(0, u), oth, lead=2): e(l)
        e("  s_waitcnt vmcnt(36) lgkmcnt(0)")
        e("  s_barrier")
        upd = [f"  v_add_u32 v{vRW(t)}, s48, v{vRWb(t)}" for t in range(4)]
        post = [f"  s_add_u32 s47, s47, {WST}", f"  s_cmp_eq_u32 s47, {WD * WST}", "  s_cselect_b32 s47, 0, s47",
                f"  s_add_u32 s48, s48, {WST}", f"  s_cmp_eq_u32 s48, {WD * WST}", "  s_cselect_b32 s48, 0, s48",
                "  s_add_u32 s49, s49, 1"]
        for l in interleave(mfmas(1, u), upd + reads(0, vRW) + post, lead=4): e(l)
        e("  s_waitcnt lgkmcnt(0)")
    e(f"  s_cmp_lt_u32 s49, {NST}")
    e("  s_cbranch_scc1 L1_loop")
    stamp()
    e("  s_lshl_b32 s42, s18, 4")
    e("  s_lshl_b32 s43, s32, 2")
    e("  s_add_u32 s42, s42, s43")
    e(f"  s_mul_i32 s42, s42, {KB2}")
    e("  s_lshl_b32 s43, s19, 1")
    e("  s_add_u32 s42, s42, s43")
    e("  s_lshl_b32 s42, s42, 10")
    e("  v_lshlrev_b32 v20, 4, v1")
    import math, struct
    c0 = -2.0 * math.sqrt(2.0 / math.pi) * math.log2(math.e)
    c1 = c0 * 0.044715
    def f2u(x): return struct.unpack("<I", struct.pack("<f", x))[0]
    e(f"  v_mov_b32 v16, {f2u(c0):#x}")
    e(f"  v_mov_b32 v17, {f2u(c0):#x}")
    e(f"  v_mov_b32 v18, {f2u(c1):#x}")
    e(f"  v_mov_b32 v19, {f2u(c1):#x}")
    e("  s_nop 3")
    n = 0
    for a in range(4):
        for p in range(2):
            dst = 184 + (n & 3) * 4; n += 1
            pairs = [(2 * p + tt, q) for tt in range(2) for q in range(2)]
            T = [152 + 4 * i for i in range(4)]
            def G(i): t, q = pairs[i]; return acc(0, t, a) + 2 * q
            def U(i): t, q = pairs[i]; return acc(1, t, a) + 2 * q
            for i in range(4): e(f"  v_pk_mul_f32 v[{T[i]}:{T[i]+1}], v[{G(i)}:{G(i)+1}], v[{G(i)}:{G(i)+1}]")
            for i in range(4): e(f"  v_pk_fma_f32 v[{T[i]}:{T[i]+1}], v[{T[i]}:{T[i]+1}], v[18:19], v[16:17]")
            for i in range(4): e(f"  v_pk_mul_f32 v[{T[i]}:{T[i]+1}], v[{T[i]}:{T[i]+1}], v[{G(i)}:{G(i)+1}]")
            for i in range(4):
                e(f"  v_exp_f32 v{T[i]}, v{T[i]}")
                e(f"  v_exp_f32 v{T[i]+1}, v{T[i]+1}")
            for i in range(4): e(f"  v_pk_mul_f32 v[{T[i]+2}:{T[i]+3}], v[{G(i)}:{G(i)+1}], v[{U(i)}:{U(i)+1}]")
            for i in range(4): e(f"  v_pk_add_f32 v[{T[i]}:{T[i]+1}], v[{T[i]}:{T[i]+1}], 1.0 op_sel_hi:[1,0]")
            for i in range(4):
                e(f"  v_rcp_f32 v{T[i]}, v{T[i]}")
                e(f"  v_rcp_f32 v{T[i]+1}, v{T[i]+1}")
            e("  s_nop 0")
            for i in range(4): e(f"  v_pk_mul_f32 v[{T[i]}:{T[i]+1}], v[{T[i]}:{T[i]+1}], v[{T[i]+2}:{T[i]+3}]")
            for i in range(4): e(f"  v_cvt_pk_bf16_f32 v{dst + i}, v{T[i]}, v{T[i]+1}")
            e(f"  s_add_u32 s43, s42, {a * KB2 * 1024 + p * 1024}")
            e(f"  buffer_store_dwordx4 v[{dst}:{dst+3}], v20, s[28:31], s43 offen {STFLAG}")
    stamp()
    if INSTR: e("  s_waitcnt vmcnt(0)")
    stamp()
    stamp_flush(160, "L1_dbg")
    wg_times(160, "L1_wt", 0)
    e("  s_endpgm")

    e("L1_transposer:")
    e("  s_waitcnt lgkmcnt(0)")
    e("  s_mov_b32 s28, s12")
    e("  s_and_b32 s29, s13, 0xffff")
    e(f"  s_mov_b32 s30, {WS_USED}")
    e("  s_mov_b32 s31, 0x00020000")
    e("  s_lshl_b32 s18, s14, 2")
    e("  s_add_u32 s18, s18, s15")
    e("  s_sub_u32 s18, s18, 28")
    e("  s_lshl_b32 s19, s14, 3")
    e("  s_add_u32 s19, s19, s15")
    e("  s_sub_u32 s19, s19, 48")
    e("  s_cmp_lt_u32 s14, 6")
    e("  s_cselect_b32 s18, s18, s19")
    e("  s_mov_b32 s20, s10")
    e("  s_and_b32 s21, s11, 0xffff")
    e(f"  s_mov_b32 s22, {F * D * 2}")
    e("  s_mov_b32 s23, 0x00020000")
    e("  s_mul_i32 s33, s32, 160")
    e("  s_mov_b32 s34, 52429")
    for q in range(5):
        e(f"  v_add_u32 v20, {q * 64}, v1")
        e("  v_mul_lo_u32 v21, v20, s34")
        e("  v_lshrrev_b32 v21, 19, v21")
        e("  v_mul_u32_u24 v22, 10, v21")
        e("  v_sub_u32 v22, v20, v22")
        e("  v_mul_u32_u24 v21, 1280, v21")
        e("  v_lshlrev_b32 v22, 4, v22")
        e(f"  v_add3_u32 v{2 + q}, v21, v22, s33")
    e("  v_lshrrev_b32 v21, 2, v1")
    e("  v_mul_u32_u24 v21, 160, v21")
    e("  v_and_b32 v22, 3, v1")
    e("  v_lshlrev_b32 v22, 3, v22")
    e("  s_mul_i32 s35, s32, 10240")
    e("  v_add3_u32 v7, v21, v22, s35")
    e("  v_lshlrev_b32 v8, 4, v1")
    e("L1_tr_loop:")
    e("  s_mul_i32 s37, s18, 40960")
    for i in range(2):
        e(f"  s_add_u32 s36, s37, {i * 640}")
        for q in range(5):
            e(f"  s_add_u32 m0, s35, {i * 5120 + q * 1024}")
            e("  s_nop 0")
            e(f"  buffer_load_dwordx4 v{2 + q}, s[20:23], s36 offen lds")
    e("  s_waitcnt vmcnt(0)")
    for i in range(2):
        for t in range(5):
            for h in range(2):
                r = 24 + (i * 5 + t) * 4 + h * 2
                e(f"  ds_read_b64_tr_b16 v[{r}:{r+1}], v7 offset:{i * 5120 + h * 2560 + t * 32}")
    e(f"  s_mul_i32 s38, s32, {5 * KB2}")
    e("  s_add_u32 s38, s38, s18")
    e("  s_lshl_b32 s38, s38, 10")
    e("  s_waitcnt lgkmcnt(0)")
    for i in range(2):
        for t in range(5):
            r = 24 + (i * 5 + t) * 4
            e(f"  s_add_u32 s39, s38, {WDT_OFF + (i * 20 + t) * KB2 * 1024}")
            e(f"  buffer_store_dwordx4 v[{r}:{r+3}], v8, s[28:31], s39 offen {STFLAG}")
    e("  s_waitcnt vmcnt(0)")
    e("  s_add_u32 s18, s18, 40")
    e(f"  s_cmp_lt_u32 s18, {KB2}")
    e("  s_cbranch_scc1 L1_tr_loop")
    wg_times(80, "L1_wt2", 0)
    e("L1_end:")
    e("  s_endpgm")


def k2():
    DEPTH = 4
    NB = 14
    ACC = 16
    def acc(tn, a): return ACC + (a * 5 + tn) * 4
    RING = 96
    def hf(slot, a): return RING + slot * 36 + a * 4
    def wfr(slot, tn): return RING + slot * 36 + 16 + tn * 4

    e("standalone__geglu_ffn__prompt_k2_kernel:")
    e("  s_cmp_ge_u32 s2, 256")
    e("  s_cbranch_scc1 L2_end")
    stamp_reset()
    if INSTR: e("  s_memrealtime s[62:63]")
    stamp()
    e("  s_load_dwordx2 s[4:5], s[0:1], 32")
    e("  s_load_dwordx2 s[6:7], s[0:1], 48")
    e("  v_lshrrev_b32 v2, 6, v0")
    e("  v_and_b32 v1, 63, v0")
    e("  s_and_b32 s14, s2, 7")
    e("  s_lshr_b32 s15, s2, 3")
    e("  v_readfirstlane_b32 s32, v2")
    e("  s_and_b32 s16, s14, 1")
    e("  s_lshl_b32 s16, s16, 2")
    e("  s_and_b32 s17, s15, 3")
    e("  s_add_u32 s16, s16, s17")
    e("  s_lshr_b32 s17, s14, 1")
    e("  s_lshl_b32 s17, s17, 3")
    e("  s_lshr_b32 s18, s15, 2")
    e("  s_add_u32 s17, s17, s18")
    e("  s_mul_i32 s18, s32, 14")
    e("  s_cmp_eq_u32 s32, 3")
    e("  s_cselect_b32 s19, 1, 0")
    e("  s_sub_u32 s18, s18, s19")
    for a in range(4):
        e(f"  s_add_u32 s19, s32, {a}")
        e("  s_and_b32 s19, s19, 3")
        e("  s_lshl_b32 s20, s17, 2")
        e("  s_add_u32 s19, s19, s20")
        e(f"  s_mul_i32 s19, s19, {KB2}")
        e("  s_add_u32 s19, s19, s18")
        e(f"  s_lshl_b32 s{40 + a}, s19, 10")
    for tn in range(5):
        e("  s_mul_i32 s19, s16, 5")
        e(f"  s_add_u32 s19, s19, {tn}")
        e(f"  s_mul_i32 s19, s19, {KB2}")
        e("  s_add_u32 s19, s19, s18")
        e("  s_lshl_b32 s19, s19, 10")
        e(f"  s_add_u32 s{44 + tn}, s19, {WDT_OFF}")
    e("  v_lshlrev_b32 v3, 4, v1")
    e("  s_waitcnt lgkmcnt(0)")
    e("  s_mov_b32 s8, s6")
    e("  s_and_b32 s9, s7, 0xffff")
    e(f"  s_mov_b32 s10, {WS_USED}")
    e("  s_mov_b32 s11, 0x00020000")
    e("  s_mov_b32 s24, s4")
    e("  s_and_b32 s25, s5, 0xffff")
    e(f"  s_mov_b32 s26, {M * D * 2}")
    e("  s_mov_b32 s27, 0x00020000")

    def loads(b):
        slot = b % DEPTH
        L = []
        pre = []
        if b == NB - 1:
            pre.append("  s_cmp_lt_u32 s32, 2")
            pre.append("  s_cselect_b32 s50, s50, 0x40000000")
        for tn in range(5):
            r = wfr(slot, tn)
            L.append(f"  s_add_u32 s{52 + (tn & 1)}, s{44 + tn}, s50")
            L.append(f"  buffer_load_dwordx4 v[{r}:{r+3}], v3, s[8:11], s{52 + (tn & 1)} offen {LD2}")
        for a in range(4):
            r = hf(slot, a)
            L.append(f"  s_add_u32 s{52 + (a & 1)}, s{40 + a}, s50")
            L.append(f"  buffer_load_dwordx4 v[{r}:{r+3}], v3, s[8:11], s{52 + (a & 1)} offen {LD2}")
        post = ["  s_add_u32 s50, s50, 1024", "  s_cmp_eq_u32 s50, s51", "  s_cselect_b32 s50, 0, s50"]
        return pre, L, post

    e("  s_cmp_lt_u32 s32, 2")
    e("  s_cselect_b32 s51, 14, 13")
    e("  s_lshl_b32 s51, s51, 10")
    if ROT == 1:
        e("  s_and_b32 s50, s15, 3")
        e("  s_mul_i32 s50, s50, 3")
        e("  s_lshr_b32 s52, s15, 2")
        e("  s_mul_i32 s52, s52, 5")
        e("  s_add_u32 s50, s50, s52")
        for _ in range(3):
            e("  s_cmp_ge_u32 s50, 13")
            e("  s_cselect_b32 s52, 13, 0")
            e("  s_sub_u32 s50, s50, s52")
        e("  s_lshl_b32 s50, s50, 10")
    else:
        e("  s_mov_b32 s50, 0")
    for b in range(DEPTH):
        pre, L, post = loads(b)
        for l in pre + L + post: e(l)
    for i in range(80):
        e(f"  v_mov_b32 v{ACC + i}, 0")
    for a in range(1, 4):
        e(f"  s_add_u32 s19, s32, {a}")
        e("  s_and_b32 s19, s19, 3")
        e("  s_mul_i32 s19, s19, 15360")
        e(f"  s_add_u32 s19, s19, {(a - 1) * 5120}")
        e(f"  v_add_u32 v{3 + a}, s19, v3")
    e("  s_mul_i32 s19, s32, 15360")
    e("  v_add_u32 v7, s19, v3")

    for b in range(NB):
        slot = b % DEPTH
        nout = (min(b + DEPTH - 1, NB - 1) - b) * 9
        e(f"  s_waitcnt vmcnt({nout})")
        if b % 2 == 0: stamp()
        mf = []
        for a in range(4):
            for tn in range(5):
                c = acc(tn, a); w = wfr(slot, tn); h = hf(slot, a)
                mf.append(f"  v_mfma_f32_16x16x32_bf16 v[{c}:{c+3}], v[{w}:{w+3}], v[{h}:{h+3}], v[{c}:{c+3}]")
        for l in mf: e(l)
        if b + DEPTH < NB:
            pre, L, post = loads(b + DEPTH)
            for l in pre + L + post: e(l)
    stamp()
    e("  s_nop 7")
    for a in range(1, 4):
        for tn in range(5):
            c = acc(tn, a)
            e(f"  ds_write_b128 v{3 + a}, v[{c}:{c+3}] offset:{tn * 1024}")
    e("  s_waitcnt lgkmcnt(0)")
    e("  s_barrier")
    for r in range(3):
        for tn in range(5):
            t = RING + (r * 5 + tn) * 4
            e(f"  ds_read_b128 v[{t}:{t+3}], v7 offset:{r * 5120 + tn * 1024}")
    e("  v_and_b32 v8, 15, v1")
    e("  v_lshrrev_b32 v9, 4, v1")
    e("  s_lshl_b32 s19, s17, 6")
    e("  s_lshl_b32 s20, s32, 4")
    e("  s_add_u32 s19, s19, s20")
    e("  v_add_u32 v8, s19, v8")
    e("  v_mul_u32_u24 v8, 1280, v8")
    e("  s_mul_i32 s19, s16, 160")
    e("  v_add_u32 v8, s19, v8")
    e("  v_and_b32 v10, 1, v9")
    e("  v_lshlrev_b32 v10, 5, v10")
    e("  v_lshrrev_b32 v11, 1, v9")
    e("  v_lshl_add_u32 v10, v11, 4, v10")
    e("  v_add_u32 v10, v8, v10")
    e("  v_lshl_add_u32 v11, v9, 3, v8")
    e("  s_waitcnt lgkmcnt(0)")
    for tn in range(5):
        c = acc(tn, 0)
        for r in range(3):
            t = RING + (r * 5 + tn) * 4
            for i in range(4):
                e(f"  v_add_f32 v{c + i}, v{c + i}, v{t + i}")
    P = 200
    for tn in range(5):
        c = acc(tn, 0)
        e(f"  v_cvt_pk_bf16_f32 v{P + tn * 2}, v{c}, v{c + 1}")
        e(f"  v_cvt_pk_bf16_f32 v{P + tn * 2 + 1}, v{c + 2}, v{c + 3}")
    e("  s_nop 1")
    for p in range(2):
        r = P + p * 4
        e(f"  v_permlane16_swap_b32 v{r}, v{r + 2}")
        e(f"  v_permlane16_swap_b32 v{r + 1}, v{r + 3}")
    e("  s_nop 1")
    for p in range(2):
        r = P + p * 4
        e(f"  buffer_store_dwordx4 v[{r}:{r+3}], v10, s[24:27], 0 offen offset:{p * 64}")
    e(f"  buffer_store_dwordx2 v[{P + 8}:{P + 9}], v11, s[24:27], 0 offen offset:128")
    stamp()
    if INSTR: e("  s_waitcnt vmcnt(0)")
    stamp()
    stamp_flush(220, "L2_dbg")
    wg_times(220, "L2_wt", 1)
    e("L2_end:")
    e("  s_endpgm")


HEADER = """; Kernarg layout for this problem (56 bytes, ptrs only, base s[0:1]):
; @launch kernel=standalone__geglu_ffn__prompt_k1_kernel grid=(256,1,1) block=(512,1,1) lds=147456
; @launch kernel=standalone__geglu_ffn__prompt_k2_kernel grid=(256,1,1) block=(256,1,1) lds=61440
.amdgcn_target "amdgcn-amd-amdhsa--gfx950"
.text
"""

def kd(name, vgpr, sgpr=102, agpr=0):
    acc = (vgpr + 3) // 4 * 4
    if agpr: vgpr = acc + agpr
    return f""".amdhsa_kernel {name}
  .amdhsa_next_free_vgpr {vgpr}
  .amdhsa_next_free_sgpr {sgpr}
  .amdhsa_accum_offset {acc}
  .amdhsa_group_segment_fixed_size 0
  .amdhsa_kernarg_size 56
  .amdhsa_user_sgpr_count 2
  .amdhsa_user_sgpr_kernarg_segment_ptr 1
  .amdhsa_system_sgpr_workgroup_id_x 1
  .amdhsa_float_denorm_mode_32 3
.end_amdhsa_kernel
"""

def main():
    hdr = HEADER.rstrip("\n").replace("block=(512,1,1)", "block=(576,1,1)" if PW else "block=(512,1,1)")
    if V4: hdr = hdr.replace("block=(512,1,1) lds=147456", "block=(256,1,1) lds=98304")
    e(hdr)
    for name, fn in (("standalone__geglu_ffn__prompt_k1_kernel", k1v4 if V4 else k1), ("standalone__geglu_ffn__prompt_k2_kernel", k2)):
        e(f".globl {name}")
        e(".p2align 8")
        e(f".type {name},@function")
        fn()
    e('.section .rodata,"a"')
    e(".p2align 6")
    e(kd("standalone__geglu_ffn__prompt_k1_kernel", 216, agpr=160) if V4 else kd("standalone__geglu_ffn__prompt_k1_kernel", 168))
    e(".p2align 6")
    e(kd("standalone__geglu_ffn__prompt_k2_kernel", 240))
    path = sys.argv[1] if len(sys.argv) > 1 else "standalone__geglu_ffn__prompt.s"
    open(path, "w").write("\n".join(out) + "\n")

main()
```

```python
import sys

M, D, F = 2048, 640, 1728
KB2 = F // 32
H_BYTES = M * F * 2
WDT_OFF = 8 << 20
WDT_BYTES = F * D * 2
WS_USED = WDT_OFF + WDT_BYTES

out = []
import os
INSTR = int(os.environ.get("INSTR", "0"))
DBG_WG = int(os.environ.get("DBG_WG", "0"))
STFLAG = os.environ.get("STFLAG", "sc1")
ROT = int(os.environ.get("ROT", "2"))
EXP = os.environ.get("EXP", "")
PF = int(os.environ.get("PF", "0"))
PW = int(os.environ.get("PW", "0"))
LD1 = os.environ.get("LD1", "")
V4 = int(os.environ.get("V4", "0"))
LD2 = os.environ.get("LD2", "")
def e(s=""):
    out.append(s)
_nst = [0]
def stamp_reset():
    _nst[0] = 0
def stamp():
    if not INSTR: return
    i = _nst[0]; _nst[0] += 1
    e(f"  s_memtime s[{64 + 2*i}:{65 + 2*i}]")
def wg_times(vt, label, kidx):
    if not INSTR: return
    e("  s_memrealtime s[60:61]")
    e("  s_cmp_lg_u32 s32, 0")
    e(f"  s_cbranch_scc1 {label}")
    e("  s_load_dwordx2 s[96:97], s[0:1], 48")
    e("  s_waitcnt lgkmcnt(0)")
    e("  s_and_b32 s97, s97, 0xffff")
    e("  s_mov_b32 s98, 0x4000000")
    e("  s_mov_b32 s99, 0x00020000")
    e("  s_lshl_b32 s59, s2, 3")
    e(f"  s_add_u32 s59, s59, {(32 << 20) + kidx * 65536}")
    e(f"  v_mov_b32 v{vt}, 0")
    e(f"  v_mov_b32 v{vt + 2}, s62")
    e(f"  v_mov_b32 v{vt + 3}, s60")
    e(f"  buffer_store_dwordx2 v[{vt + 2}:{vt + 3}], v{vt}, s[96:99], s59 offen")
    e(f"{label}:")
def stamp_flush(vt, label):
    if not INSTR: return
    n = _nst[0]
    e(f"  s_memrealtime s[{64 + 2*n}:{65 + 2*n}]")
    e(f"  s_cmp_lg_u32 s2, {DBG_WG}")
    e(f"  s_cbranch_scc1 {label}")
    e("  s_cmp_lg_u32 s32, 0")
    e(f"  s_cbranch_scc1 {label}")
    e("  s_load_dwordx2 s[96:97], s[0:1], 40")
    e("  s_waitcnt lgkmcnt(0)")
    e("  s_and_b32 s97, s97, 0xffff")
    e("  s_mov_b32 s98, 256")
    e("  s_mov_b32 s99, 0x00020000")
    e(f"  v_mov_b32 v{vt}, 0")
    for i in range(n + 1):
        e(f"  v_mov_b32 v{vt + 1}, s{64 + 2*i}")
        e(f"  buffer_store_dword v{vt + 1}, v{vt}, s[96:99], 0 offen offset:{4 * i}")
    e(f"  v_mov_b32 v{vt + 1}, s62")
    e(f"  buffer_store_dword v{vt + 1}, v{vt}, s[96:99], 0 offen offset:{4 * (n + 1)}")
    e(f"{label}:")

def interleave(main, others, lead=0):
    res = []
    others = list(others)
    res += others[:lead]
    others = others[lead:]
    n, k = len(main), len(others)
    if n == 0:
        return res + others
    j = 0
    for i, m in enumerate(main):
        res.append(m)
        tgt = ((i + 1) * k) // n
        while j < tgt:
            res.append(others[j]); j += 1
    res += others[j:]
    return res

STAGE = 49152
NST = D // 64

def k1():
    ACC = 40
    def acc(mat, tt, a): return ACC + ((mat * 2 + tt) * 4 + a) * 4
    FR = {0: 104, 1: 136}
    def xf(s, a): return FR[s] + a * 4
    def wf(s, mat, tt): return FR[s] + 16 + (mat * 2 + tt) * 4
    vXe, vXo, vWe, vWo = 2, 3, 4, 5
    def vRXb(s): return 8 + s
    def vRWb(tt): return 10 + tt
    def vRX(s): return 12 + s
    def vRW(tt): return 14 + tt

    e("standalone__geglu_ffn__prompt_k1_kernel:")
    e("  s_cmp_ge_u32 s2, 256")
    e("  s_cbranch_scc1 L1_end")
    stamp_reset()
    if INSTR: e("  s_memrealtime s[62:63]")
    stamp()
    e("  s_load_dwordx8 s[4:11], s[0:1], 0")
    e("  s_load_dwordx2 s[12:13], s[0:1], 48")
    e("  v_lshrrev_b32 v20, 6, v0")
    e("  v_and_b32 v1, 63, v0")
    e("  s_and_b32 s14, s2, 7")
    e("  s_lshr_b32 s15, s2, 3")
    e("  v_readfirstlane_b32 s32, v20")
    e("  s_lshr_b32 s16, s14, 1")
    e("  s_cmp_eq_u32 s16, 3")
    e("  s_cselect_b32 s17, 24, 28")
    e("  v_lshrrev_b32 v20, 3, v1")
    e("  v_and_b32 v21, 7, v1")
    e("  v_lshrrev_b32 v22, 4, v1")
    e("  v_xor_b32 v23, v21, v22")
    e("  v_lshlrev_b32 v23, 4, v23")
    e("  v_mul_u32_u24 v24, 1280, v20")
    e("  s_mul_i32 s40, s32, 40960")
    e("  v_add3_u32 v2, v24, v23, s40")
    e("  v_xor_b32 v3, 64, v2")
    e("  v_and_b32 v23, 1, v22")
    e("  v_lshlrev_b32 v23, 1, v23")
    e("  v_xor_b32 v23, v21, v23")
    e("  v_lshlrev_b32 v23, 4, v23")
    e("  v_mul_u32_u24 v24, 3456, v20")
    e("  v_add_u32 v4, v24, v23")
    e("  v_xor_b32 v5, 64, v4")
    e("  s_and_b32 s18, s14, 1")
    e("  s_lshl_b32 s18, s18, 2")
    e("  s_and_b32 s19, s15, 3")
    e("  s_add_u32 s18, s18, s19")
    e("  s_mul_i32 s19, s16, 7")
    e("  s_lshr_b32 s33, s15, 2")
    e("  s_add_u32 s19, s19, s33")
    e("  s_and_b32 s33, s32, 1")
    e("  s_mul_i32 s34, s18, 327680")
    e("  s_lshr_b32 s35, s32, 1")
    e("  s_mul_i32 s36, s35, 55296")
    e("  s_lshl_b32 s37, s19, 7")
    e("  s_add_u32 s36, s36, s37")
    e("  s_lshl_b32 s38, s32, 12")
    e("  s_lshl_b32 s39, s33, 13")
    e("  s_lshl_b32 s40, s35, 11")
    e("  s_add_u32 s39, s39, s40")
    e("  s_add_u32 s39, s39, 32768")
    if ROT:
        if ROT == 2:
            e("  s_lshl_b32 s52, s16, 1")
            e("  s_and_b32 s53, s14, 1")
            e("  s_mul_i32 s53, s53, 5")
            e("  s_add_u32 s52, s52, s53")
        else:
            e("  s_lshr_b32 s52, s15, 2")
            e("  s_mul_i32 s52, s52, 3")
            e("  s_and_b32 s53, s15, 3")
            e("  s_lshl_b32 s53, s53, 1")
            e("  s_add_u32 s52, s52, s53")
        for _ in range(2):
            e("  s_cmp_ge_u32 s52, 10")
            e("  s_cselect_b32 s53, 10, 0")
            e("  s_sub_u32 s52, s52, s53")
        e(f"  s_mov_b32 s55, {(-9 * 128) & 0xffffffff:#x}")
        e("  s_movk_i32 s56, 128")
        e(f"  s_mov_b32 s57, {(-9 * 64 * 3456) & 0xffffffff:#x}")
        e(f"  s_mov_b32 s58, {64 * 3456}")
        e("  s_lshl_b32 s53, s52, 7")
        e("  s_add_u32 s34, s34, s53")
        e(f"  s_mul_i32 s53, s52, {64 * 3456}")
        e("  s_add_u32 s36, s36, s53")
    e(f"  s_mov_b32 s22, {M * D * 2}")
    e("  s_mov_b32 s23, 0x00020000")
    e(f"  s_mov_b32 s26, {D * F * 2}")
    e("  s_mov_b32 s27, 0x00020000")
    e("  s_cmp_eq_u32 s33, 0")
    e("  s_waitcnt lgkmcnt(0)")
    e("  s_cselect_b32 s24, s6, s8")
    e("  s_cselect_b32 s25, s7, s9")
    e("  s_mov_b32 s20, s4")
    e("  s_and_b32 s21, s5, 0xffff")
    e("  s_and_b32 s25, s25, 0xffff")
    PD = int(os.environ.get("PD", "5"))
    NPF = 2 * (PD - 2) if PF else 0
    def pf_setup():
        if not PF: return
        e("  s_lshr_b32 s42, s17, 2")
        e("  s_mul_i32 s42, s42, s32")
        e("  s_lshr_b32 s43, s15, 2")
        e("  s_add_u32 s42, s42, s43")
        e("  s_mul_i32 s43, s42, 10240")
        e("  s_mul_i32 s44, s32, 40960")
        e("  s_sub_u32 s43, s43, s44")
        e("  s_add_u32 s60, s34, s43")
        e("  s_cmp_lt_u32 s42, 32")
        e("  s_cselect_b32 s60, s60, 0x40000000")
        e("  s_and_b32 s42, s15, 3")
        e("  s_lshl_b32 s42, s42, 1")
        e("  s_add_u32 s42, s42, s35")
        e(f"  s_mul_i32 s42, s42, {8 * 3456}")
        e("  s_add_u32 s42, s42, s37")
        e(f"  s_add_u32 s61, s42, {2 * 64 * 3456}")
        e("  s_cmp_lt_u32 s32, 4")
        e("  s_cselect_b32 s61, s61, 0x40000000")
    def pf_stage():
        if not PF: return []
        return [f"  buffer_load_dwordx4 v[192:195], v{vXe}, s[20:23], s60 offen",
                f"  buffer_load_dwordx4 v[196:199], v{vWe}, s[24:27], s61 offen",
                "  s_add_u32 s60, s60, 128", f"  s_add_u32 s61, s61, {64 * 3456}"]
    def prefetch():
        pf_setup()
        for st in range(2, PD):
            for l in pf_stage(): e(l)
    TLB = int(os.environ.get("TLB", "0"))
    if TLB:
        e("  v_lshlrev_b32 v6, 12, v1")
        e("  s_lshl_b32 s42, s15, 2")
        e("  s_add_u32 s42, s42, s35")
        e("  s_mul_i32 s43, s42, 6554")
        e("  s_lshr_b32 s43, s43, 16")
        e("  s_mul_i32 s43, s43, 10")
        e("  s_sub_u32 s42, s42, s43")
        e("  s_lshl_b32 s42, s42, 18")
        e("  buffer_load_dword v104, v6, s[20:23], s42 offen")
        e("  buffer_load_dword v105, v6, s[24:27], s42 offen")
    WPF = int(os.environ.get("WPF", "0"))
    if WPF:
        e("  v_lshlrev_b32 v6, 4, v1")
        e("  s_lshl_b32 s43, s15, 2")
        e("  s_add_u32 s43, s43, s35")
        e(f"  s_mul_i32 s43, s43, {5 * 3456}")
        e("  s_mul_i32 s44, s16, 896")
        e("  s_add_u32 s43, s43, s44")
        for i in range(5):
            e(f"  buffer_load_dwordx4 v[{124 + 4*i}:{127 + 4*i}], v6, s[24:27], s43 offen")
            e("  s_add_u32 s43, s43, 3456")
        if WPF == 2: e("  s_waitcnt vmcnt(0)")
        stamp()
    XPF = int(os.environ.get("XPF", "0"))
    if XPF:
        e("  v_lshlrev_b32 v6, 4, v1")
        e("  s_and_b32 s42, s14, 1")
        e("  s_mul_i32 s42, s42, 1310720")
        e("  s_lshl_b32 s43, s15, 3")
        e("  s_add_u32 s43, s43, s32")
        e("  s_mul_i32 s43, s43, 5120")
        e("  s_add_u32 s42, s42, s43")
        for i in range(5):
            if i == 4: e("  s_add_u32 s42, s42, 4096")
            e(f"  buffer_load_dwordx4 v[{104 + 4*i}:{107 + 4*i}], v6, s[20:23], s42 offen offset:{(i & 3) * 1024}")
        if XPF == 2: e("  s_waitcnt vmcnt(0)")
        stamp()
    if PW:
        e("  s_cmp_eq_u32 s32, 8")
        e("  s_cbranch_scc1 L1_pfwave")
    if "pfwait" in EXP:
        stamp()
        e("  s_waitcnt vmcnt(0)")
        stamp()
        e("  s_barrier")
        stamp()
    e("  s_cmp_ge_u32 s15, s17")
    e("  s_cbranch_scc1 L1_transposer")

    def dma(wb):
        L = []
        for q in range(4):
            L.append(f"  s_add_u32 m0, s{50 + 0}, {q * 1024}")
            L.append(f"  s_add_u32 s{42 + (q & 1)}, s34, {q * 10240}")
            L.append(f"  buffer_load_dwordx4 v{vXo if q & 1 else vXe}, s[20:23], s{42 + (q & 1)} offen {LD1} lds")
        for o in range(2):
            L.append(f"  s_add_u32 m0, s{51}, {o * 1024}")
            L.append(f"  s_add_u32 s{42 + o}, s36, {8 * o * 3456}")
            L.append(f"  buffer_load_dwordx4 v{vWo if o else vWe}, s[24:27], s{42 + o} offen {LD1} lds")
        return L
    def dma_pre(wb):
        return [f"  s_add_u32 s50, s38, {wb}", f"  s_add_u32 s51, s39, {wb}"]
    def dma_post():
        if not ROT:
            return ["  s_add_u32 s34, s34, 128", f"  s_add_u32 s36, s36, {64 * 3456}"]
        return ["  s_add_u32 s52, s52, 1", "  s_cmp_eq_u32 s52, 10",
                "  s_cselect_b32 s52, 0, s52",
                "  s_cselect_b32 s53, s55, s56",
                "  s_cselect_b32 s54, s57, s58",
                "  s_add_u32 s34, s34, s53", "  s_add_u32 s36, s36, s54"]

    for st in range(2):
        for l in dma_pre(st * STAGE) + dma(0) + dma_post(): e(l)
    if "pfirst" not in EXP: prefetch()

    e("  s_mov_b32 s28, s12")
    e("  s_and_b32 s29, s13, 0xffff")
    e(f"  s_mov_b32 s30, {WS_USED}")
    e("  s_mov_b32 s31, 0x00020000")
    e("  s_and_b32 s40, s32, 3")
    e("  s_lshr_b32 s41, s32, 2")
    e("  v_and_b32 v20, 15, v1")
    e("  v_lshrrev_b32 v21, 4, v1")
    e("  v_lshrrev_b32 v22, 1, v20")
    e("  v_xor_b32 v22, v21, v22")
    e("  v_lshlrev_b32 v22, 4, v22")
    e("  v_lshlrev_b32 v23, 7, v20")
    e("  s_lshl_b32 s42, s40, 13")
    e(f"  v_add3_u32 v{vRXb(0)}, v22, v23, s42")
    e(f"  v_xor_b32 v{vRXb(1)}, 64, v{vRXb(0)}")
    e("  v_bfe_u32 v22, v1, 2, 2")
    e("  v_and_b32 v23, 3, v1")
    e("  v_lshrrev_b32 v24, 1, v22")
    e("  v_and_b32 v25, 1, v21")
    e("  v_lshl_add_u32 v24, v25, 1, v24")
    e("  v_lshl_add_u32 v25, v21, 3, v22")
    e("  v_lshlrev_b32 v25, 7, v25")
    e("  v_lshl_add_u32 v25, v23, 3, v25")
    e("  v_add_u32 v25, 32768, v25")
    e("  s_lshl_b32 s42, s41, 1")
    for tt in range(2):
        e(f"  s_add_u32 s43, s42, {tt}")
        e("  v_xor_b32 v26, s43, v24")
        e(f"  v_lshl_add_u32 v{vRWb(tt)}, v26, 5, v25")
    for i in range(64):
        e(f"  v_mov_b32 v{ACC + i}, 0")
    for i in range(32):
        e(f"  v_mov_b32 v{FR[1] + i}, 0")
    e(f"  s_mov_b32 s47, {2 * STAGE}")
    e("  s_mov_b32 s48, 0")
    e("  s_mov_b32 s49, 0")

    def reads(s):
        L = []
        if "nords" in EXP: return L
        for mat in range(2):
            for tt in range(2):
                for h in range(2):
                    r = wf(s, mat, tt) + 2 * h
                    L.append(f"  ds_read_b64_tr_b16 v[{r}:{r+1}], v{vRW(tt)} offset:{mat * 8192 + s * 4096 + h * 512}")
        for a in range(4):
            r = xf(s, a)
            L.append(f"  ds_read_b128 v[{r}:{r+3}], v{vRX(s)} offset:{a * 2048}")
        return L

    def mfmas(s):
        L = []
        for a in range(4):
            for mat in range(2):
                for tt in range(2):
                    c = acc(mat, tt, a)
                    w = wf(s, mat, tt); x = xf(s, a)
                    L.append(f"  v_mfma_f32_16x16x32_bf16 v[{c}:{c+3}], v[{w}:{w+3}], v[{x}:{x+3}], v[{c}:{c+3}]")
        return L

    stamp()
    late_pf = NPF
    PFI = 2 if PF else 0
    e(f"  s_waitcnt vmcnt({6 + late_pf})")
    def body(endwait):
        if "nobar" not in EXP: e("  s_barrier")
        for s_ in range(2):
            e(f"  v_add_u32 v{vRX(s_)}, s48, v{vRXb(s_)}")
            e(f"  v_add_u32 v{vRW(s_)}, s48, v{vRWb(s_)}")
        pre = dma_pre("s47") + [f"  s_cmp_lt_u32 s49, {NST - 2}",
                                "  s_cselect_b32 s34, s34, 0x40000000",
                                "  s_cselect_b32 s36, s36, 0x40000000"]
        dm = dma(0)
        if "nodma" in EXP: dm = []
        if "spread" in EXP:
            oth = reads(0) + pre + dm[:9]
            dmB = dm[9:] + dma_post()
        else:
            pfl = []
            if PF:
                pfl = [f"  s_cmp_lt_u32 s49, {NST - PD}", "  s_cselect_b32 s60, s60, 0x40000000",
                       "  s_cselect_b32 s61, s61, 0x40000000"] + pf_stage()
            oth = reads(0) + pre + dm + dma_post()
            dmB = pfl
        for l in interleave(mfmas(1), oth, lead=(12 if "front" in EXP else 4)): e(l)
        e("  s_waitcnt lgkmcnt(0)")
        post = [f"  s_add_u32 s47, s47, {STAGE}", f"  s_cmp_eq_u32 s47, {3 * STAGE}", "  s_cselect_b32 s47, 0, s47",
                f"  s_add_u32 s48, s48, {STAGE}", f"  s_cmp_eq_u32 s48, {3 * STAGE}", "  s_cselect_b32 s48, 0, s48",
                "  s_add_u32 s49, s49, 1"]
        for l in interleave(mfmas(0), reads(1) + dmB + post, lead=(12 if "front" in EXP else 0)): e(l)
        e(f"  s_cmp_lt_u32 s49, {NST}")
        e(f"  s_waitcnt vmcnt({endwait}) lgkmcnt(0)")
    if late_pf:
        body(6 + late_pf + PFI)
    e("  .p2align 6")
    e("L1_loop:")
    body(6 + 2 * PFI)
    e("  s_cbranch_scc1 L1_loop")
    for l in mfmas(1): e(l)
    stamp()
    e("  s_lshl_b32 s42, s18, 4")
    e("  s_lshl_b32 s43, s40, 2")
    e("  s_add_u32 s42, s42, s43")
    e(f"  s_mul_i32 s42, s42, {KB2}")
    e("  s_lshl_b32 s43, s19, 1")
    e("  s_add_u32 s42, s42, s43")
    e("  s_add_u32 s42, s42, s41")
    e("  s_lshl_b32 s42, s42, 10")
    e("  v_lshlrev_b32 v20, 4, v1")
    import math, struct
    c0 = -2.0 * math.sqrt(2.0 / math.pi) * math.log2(math.e)
    c1 = c0 * 0.044715
    def f2u(x): return struct.unpack("<I", struct.pack("<f", x))[0]
    e(f"  v_mov_b32 v16, {f2u(c0):#x}")
    e(f"  v_mov_b32 v17, {f2u(c0):#x}")
    e(f"  v_mov_b32 v18, {f2u(c1):#x}")
    e(f"  v_mov_b32 v19, {f2u(c1):#x}")
    e("  s_nop 3")
    for a in range(4):
        dst = 24 + (a & 1) * 4
        pairs = [(tt, p) for tt in range(2) for p in range(2)]
        T = [104 + 4 * i for i in range(4)]
        def G(i): tt, p = pairs[i]; return acc(0, tt, a) + 2 * p
        def U(i): tt, p = pairs[i]; return acc(1, tt, a) + 2 * p
        for i in range(4): e(f"  v_pk_mul_f32 v[{T[i]}:{T[i]+1}], v[{G(i)}:{G(i)+1}], v[{G(i)}:{G(i)+1}]")
        for i in range(4): e(f"  v_pk_fma_f32 v[{T[i]}:{T[i]+1}], v[{T[i]}:{T[i]+1}], v[18:19], v[16:17]")
        for i in range(4): e(f"  v_pk_mul_f32 v[{T[i]}:{T[i]+1}], v[{T[i]}:{T[i]+1}], v[{G(i)}:{G(i)+1}]")
        for i in range(4):
            e(f"  v_exp_f32 v{T[i]}, v{T[i]}")
            e(f"  v_exp_f32 v{T[i]+1}, v{T[i]+1}")
        for i in range(4): e(f"  v_pk_mul_f32 v[{T[i]+2}:{T[i]+3}], v[{G(i)}:{G(i)+1}], v[{U(i)}:{U(i)+1}]")
        for i in range(4): e(f"  v_pk_add_f32 v[{T[i]}:{T[i]+1}], v[{T[i]}:{T[i]+1}], 1.0 op_sel_hi:[1,0]")
        for i in range(4):
            e(f"  v_rcp_f32 v{T[i]}, v{T[i]}")
            e(f"  v_rcp_f32 v{T[i]+1}, v{T[i]+1}")
        e("  s_nop 0")
        for i in range(4): e(f"  v_pk_mul_f32 v[{T[i]}:{T[i]+1}], v[{T[i]}:{T[i]+1}], v[{T[i]+2}:{T[i]+3}]")
        for i in range(4): e(f"  v_cvt_pk_bf16_f32 v{dst + i}, v{T[i]}, v{T[i]+1}")
        e(f"  s_add_u32 s43, s42, {a * KB2 * 1024}")
        e(f"  buffer_store_dwordx4 v[{dst}:{dst+3}], v20, s[28:31], s43 offen {STFLAG}")
    stamp()
    if INSTR: e("  s_waitcnt vmcnt(0)")
    stamp()
    stamp_flush(120, "L1_dbg")
    wg_times(120, "L1_wt", 0)
    e("  s_endpgm")

    if PW:
        e("L1_pfwave:")
        e("  s_cmp_ge_u32 s15, s17")
        e("  s_cbranch_scc1 L1_end")
        e("  s_mov_b32 s24, s6")
        e("  s_and_b32 s25, s7, 0xffff")
        e("  s_mov_b32 s56, s8")
        e("  s_and_b32 s57, s9, 0xffff")
        e(f"  s_mov_b32 s58, {D * F * 2}")
        e("  s_mov_b32 s59, 0x00020000")
        e("  v_lshrrev_b32 v20, 3, v1")
        e("  v_and_b32 v21, 7, v1")
        e("  v_lshlrev_b32 v21, 4, v21")
        e("  v_mad_u32_u24 v6, v20, s101, v21") if False else None
        e("  v_mul_u32_u24 v6, 1280, v20")
        e("  v_add_u32 v6, v6, v21")
        e("  v_mul_u32_u24 v7, 3456, v20")
        e("  v_add_u32 v7, v7, v21")
        e("  s_lshr_b32 s47, s17, 2")
        e("  s_lshr_b32 s48, s15, 2")
        for i in range(5):
            e("  s_mul_i32 s49, s48, 10240")
            e(f"  s_add_u32 s{42 + i}, s34, s49")
            e(f"  s_add_u32 s{42 + i}, s{42 + i}, 256")
            e("  s_cmp_lt_u32 s48, 32")
            e(f"  s_cselect_b32 s{42 + i}, s{42 + i}, 0x40000000")
            e("  s_add_u32 s48, s48, s47")
        e("  s_and_b32 s50, s15, 3")
        e(f"  s_mul_i32 s50, s50, {16 * 3456}")
        e("  s_add_u32 s50, s50, s37")
        e(f"  s_add_u32 s50, s50, {128 * 3456}")
        def pstage():
            for i in range(5):
                e(f"  buffer_load_dwordx4 v[8:11], v6, s[20:23], s{42 + i} offen")
                e(f"  s_add_u32 s{42 + i}, s{42 + i}, 128")
            e(f"  s_add_u32 s51, s50, {8 * 3456}")
            e("  buffer_load_dwordx4 v[12:15], v7, s[24:27], s50 offen")
            e("  buffer_load_dwordx4 v[12:15], v7, s[56:59], s50 offen")
            e("  buffer_load_dwordx4 v[12:15], v7, s[24:27], s51 offen")
            e("  buffer_load_dwordx4 v[12:15], v7, s[56:59], s51 offen")
            e(f"  s_add_u32 s50, s50, {64 * 3456}")
        PWA = int(os.environ.get("PWA", "4"))
        nxt = 2
        for it in range(NST):
            n = PWA if it == 0 else 1
            for _ in range(n):
                if nxt < NST:
                    pstage(); nxt += 1
            e("  s_barrier")
        e("  s_endpgm")
    e("L1_transposer:")
    e("  s_mov_b32 s28, s12")
    e("  s_and_b32 s29, s13, 0xffff")
    e(f"  s_mov_b32 s30, {WS_USED}")
    e("  s_mov_b32 s31, 0x00020000")
    e("  s_lshl_b32 s18, s14, 2")
    e("  s_add_u32 s18, s18, s15")
    e("  s_sub_u32 s18, s18, 28")
    e("  s_lshl_b32 s19, s14, 3")
    e("  s_add_u32 s19, s19, s15")
    e("  s_sub_u32 s19, s19, 48")
    e("  s_cmp_lt_u32 s14, 6")
    e("  s_cselect_b32 s18, s18, s19")
    e("  s_mov_b32 s20, s10")
    e("  s_and_b32 s21, s11, 0xffff")
    e(f"  s_mov_b32 s22, {F * D * 2}")
    e("  s_mov_b32 s23, 0x00020000")
    e("  s_mul_i32 s33, s32, 160")
    e("  s_mov_b32 s34, 52429")
    for q in range(5):
        e(f"  v_add_u32 v20, {q * 64}, v1")
        e("  v_mul_lo_u32 v21, v20, s34")
        e("  v_lshrrev_b32 v21, 19, v21")
        e("  v_mul_u32_u24 v22, 10, v21")
        e("  v_sub_u32 v22, v20, v22")
        e("  v_mul_u32_u24 v21, 1280, v21")
        e("  v_lshlrev_b32 v22, 4, v22")
        e(f"  v_add3_u32 v{2 + q}, v21, v22, s33")
    e("  v_lshrrev_b32 v21, 2, v1")
    e("  v_mul_u32_u24 v21, 160, v21")
    e("  v_and_b32 v22, 3, v1")
    e("  v_lshlrev_b32 v22, 3, v22")
    e("  s_mul_i32 s35, s32, 5120")
    e("  v_add3_u32 v7, v21, v22, s35")
    e("  v_lshlrev_b32 v8, 4, v1")
    e("  s_mov_b32 s36, 0")
    e("L1_tr_loop:")
    e("  s_mul_i32 s37, s18, 40960")
    for q in range(5):
        e(f"  s_add_u32 m0, s35, {q * 1024}")
        e("  s_nop 0")
        e(f"  buffer_load_dwordx4 v{2 + q}, s[20:23], s37 offen {LD1} lds")
    e("  s_waitcnt vmcnt(0)")
    for t in range(5):
        for h in range(2):
            r = 24 + t * 4 + h * 2
            e(f"  ds_read_b64_tr_b16 v[{r}:{r+1}], v7 offset:{h * 2560 + t * 32}")
    e(f"  s_mul_i32 s38, s32, {5 * KB2}")
    e("  s_add_u32 s38, s38, s18")
    e("  s_lshl_b32 s38, s38, 10")
    e("  s_waitcnt lgkmcnt(0)")
    for t in range(5):
        r = 24 + t * 4
        e(f"  s_add_u32 s39, s38, {WDT_OFF + t * KB2 * 1024}")
        e(f"  buffer_store_dwordx4 v[{r}:{r+3}], v8, s[28:31], s39 offen {STFLAG}")
    e("  s_waitcnt vmcnt(0)")
    e("  s_add_u32 s18, s18, 40")
    e(f"  s_cmp_lt_u32 s18, {KB2}")
    e("  s_cbranch_scc1 L1_tr_loop")
    wg_times(40, "L1_wt2", 0)
    e("L1_end:")
    e("  s_endpgm")


def k1v4():
    WST = 16384; WD = 6; XD = 5
    ACC = 24
    def acc(mat, t, a): return ACC + ((mat * 4 + t) * 4 + a) * 4
    FR = {0: 152, 1: 184}
    def wf(s, mat, t): return FR[s] + (mat * 4 + t) * 4
    def xa(slot, s, a): return slot * 32 + (s * 4 + a) * 4
    vWe, vWo, vX = 2, 3, 4
    def vRWb(t): return 8 + t
    def vRW(t): return 12 + t
    e("standalone__geglu_ffn__prompt_k1_kernel:")
    e("  s_cmp_ge_u32 s2, 256")
    e("  s_cbranch_scc1 L1_end")
    stamp_reset()
    if INSTR: e("  s_memrealtime s[62:63]")
    stamp()
    e("  s_load_dwordx8 s[4:11], s[0:1], 0")
    e("  s_load_dwordx2 s[12:13], s[0:1], 48")
    e("  v_lshrrev_b32 v20, 6, v0")
    e("  v_and_b32 v1, 63, v0")
    e("  s_and_b32 s14, s2, 7")
    e("  s_lshr_b32 s15, s2, 3")
    e("  v_readfirstlane_b32 s32, v20")
    e("  s_lshr_b32 s16, s14, 1")
    e("  s_cmp_eq_u32 s16, 3")
    e("  s_cselect_b32 s17, 24, 28")
    e("  s_cmp_ge_u32 s15, s17")
    e("  s_cbranch_scc1 L1_transposer")
    e("  v_lshrrev_b32 v20, 3, v1")
    e("  v_and_b32 v21, 7, v1")
    e("  v_lshrrev_b32 v22, 4, v1")
    e("  v_and_b32 v23, 1, v22")
    e("  v_lshlrev_b32 v23, 1, v23")
    e("  v_xor_b32 v23, v21, v23")
    e("  v_lshlrev_b32 v23, 4, v23")
    e("  v_mul_u32_u24 v21, 3456, v20")
    e(f"  v_add_u32 v{vWe}, v21, v23")
    e(f"  v_xor_b32 v{vWo}, 64, v{vWe}")
    e("  v_and_b32 v20, 15, v1")
    e("  v_mul_u32_u24 v21, 1280, v20")
    e(f"  v_lshl_add_u32 v{vX}, v22, 4, v21")
    e("  s_and_b32 s18, s14, 1")
    e("  s_lshl_b32 s18, s18, 2")
    e("  s_and_b32 s19, s15, 3")
    e("  s_add_u32 s18, s18, s19")
    e("  s_mul_i32 s19, s16, 7")
    e("  s_lshr_b32 s33, s15, 2")
    e("  s_add_u32 s19, s19, s33")
    e("  s_and_b32 s33, s32, 1")
    e("  s_lshr_b32 s35, s32, 1")
    e("  s_mul_i32 s34, s18, 327680")
    e("  s_mul_i32 s40, s32, 81920")
    e("  s_add_u32 s34, s34, s40")
    e(f"  s_mul_i32 s36, s35, {32 * 3456}")
    e("  s_lshl_b32 s37, s19, 7")
    e("  s_add_u32 s36, s36, s37")
    e("  s_lshl_b32 s39, s33, 13")
    e("  s_lshl_b32 s40, s35, 12")
    e("  s_add_u32 s39, s39, s40")
    e(f"  s_mov_b32 s22, {M * D * 2}")
    e("  s_mov_b32 s23, 0x00020000")
    e(f"  s_mov_b32 s26, {D * F * 2}")
    e("  s_mov_b32 s27, 0x00020000")
    e("  s_cmp_eq_u32 s33, 0")
    e("  s_waitcnt lgkmcnt(0)")
    e("  s_cselect_b32 s24, s6, s8")
    e("  s_cselect_b32 s25, s7, s9")
    e("  s_mov_b32 s20, s4")
    e("  s_and_b32 s21, s5, 0xffff")
    e("  s_and_b32 s25, s25, 0xffff")

    def dmaW(wb):
        L = [f"  s_add_u32 s50, s39, {wb}"]
        for o in range(4):
            L.append(f"  s_add_u32 m0, s50, {o * 1024}")
            L.append(f"  s_add_u32 s{42 + (o & 1)}, s36, {8 * o * 3456}")
            L.append(f"  buffer_load_dwordx4 v{vWo if o & 1 else vWe}, s[24:27], s{42 + (o & 1)} offen lds")
        L.append(f"  s_add_u32 s36, s36, {64 * 3456}")
        return L
    def ldX(slot):
        L = []
        for a in range(4):
            L.append(f"  s_add_u32 s{44 + (a & 1)}, s34, {a * 20480}")
            for s_ in range(2):
                r = xa(slot, s_, a)
                L.append(f"  buffer_load_dwordx4 a[{r}:{r+3}], v{vX}, s[20:23], s{44 + (a & 1)} offen offset:{s_ * 64}")
        L.append("  s_add_u32 s34, s34, 128")
        return L
    for st in range(4):
        for l in dmaW(st * WST) + ldX(st): e(l)
    for l in dmaW(4 * WST): e(l)
    e("  s_mov_b32 s28, s12")
    e("  s_and_b32 s29, s13, 0xffff")
    e(f"  s_mov_b32 s30, {WS_USED}")
    e("  s_mov_b32 s31, 0x00020000")
    e("  v_lshrrev_b32 v21, 4, v1")
    e("  v_bfe_u32 v22, v1, 2, 2")
    e("  v_and_b32 v23, 3, v1")
    e("  v_lshrrev_b32 v16, 1, v22")
    e("  v_and_b32 v17, 1, v21")
    e("  v_lshl_add_u32 v16, v17, 1, v16")
    e("  v_lshl_add_u32 v17, v21, 3, v22")
    e("  v_lshlrev_b32 v17, 7, v17")
    e("  v_lshl_add_u32 v17, v23, 3, v17")
    for t in range(4):
        e(f"  v_xor_b32 v18, {t}, v16")
        e(f"  v_lshl_add_u32 v{vRWb(t)}, v18, 5, v17")
    for i in range(128):
        e(f"  v_mov_b32 v{ACC + i}, 0")
    e(f"  s_mov_b32 s47, {5 * WST}")
    e(f"  s_mov_b32 s48, {WST}")
    e("  s_mov_b32 s49, 0")

    def reads(s_, base):
        L = []
        for mat in range(2):
            for t in range(4):
                for h in range(2):
                    r = wf(s_, mat, t) + 2 * h
                    L.append(f"  ds_read_b64_tr_b16 v[{r}:{r+1}], v{base(t)} offset:{mat * 8192 + s_ * 4096 + h * 512}")
        return L
    def mfmas(s_, slot):
        L = []
        for a in range(4):
            for mat in range(2):
                for t in range(4):
                    c = acc(mat, t, a); w = wf(s_, mat, t); x = xa(slot, s_, a)
                    L.append(f"  v_mfma_f32_16x16x32_bf16 v[{c}:{c+3}], v[{w}:{w+3}], a[{x}:{x+3}], v[{c}:{c+3}]")
        return L
    stamp()
    e("  s_waitcnt vmcnt(40)")
    e("  s_barrier")
    for t in range(4): e(f"  v_mov_b32 v{vRW(t)}, v{vRWb(t)}")
    for l in reads(0, vRWb): e(l)
    e("  s_waitcnt lgkmcnt(0)")
    e("  .p2align 6")
    e("L1_loop:")
    for u in range(XD):
        oob = [f"  s_cmp_lt_u32 s49, {NST - 5}", "  s_cselect_b32 s36, s36, 0x40000000",
               f"  s_cmp_lt_u32 s49, {NST - 4}", "  s_cselect_b32 s34, s34, 0x40000000"]
        oth = reads(1, vRW) + oob + dmaW("s47") + ldX((u + 4) % XD)
        for l in interleave(mfmas(0, u), oth, lead=2): e(l)
        e("  s_waitcnt vmcnt(36) lgkmcnt(0)")
        e("  s_barrier")
        upd = [f"  v_add_u32 v{vRW(t)}, s48, v{vRWb(t)}" for t in range(4)]
        post = [f"  s_add_u32 s47, s47, {WST}", f"  s_cmp_eq_u32 s47, {WD * WST}", "  s_cselect_b32 s47, 0, s47",
                f"  s_add_u32 s48, s48, {WST}", f"  s_cmp_eq_u32 s48, {WD * WST}", "  s_cselect_b32 s48, 0, s48",
                "  s_add_u32 s49, s49, 1"]
        for l in interleave(mfmas(1, u), upd + reads(0, vRW) + post, lead=4): e(l)
        e("  s_waitcnt lgkmcnt(0)")
    e(f"  s_cmp_lt_u32 s49, {NST}")
    e("  s_cbranch_scc1 L1_loop")
    stamp()
    e("  s_lshl_b32 s42, s18, 4")
    e("  s_lshl_b32 s43, s32, 2")
    e("  s_add_u32 s42, s42, s43")
    e(f"  s_mul_i32 s42, s42, {KB2}")
    e("  s_lshl_b32 s43, s19, 1")
    e("  s_add_u32 s42, s42, s43")
    e("  s_lshl_b32 s42, s42, 10")
    e("  v_lshlrev_b32 v20, 4, v1")
    import math, struct
    c0 = -2.0 * math.sqrt(2.0 / math.pi) * math.log2(math.e)
    c1 = c0 * 0.044715
    def f2u(x): return struct.unpack("<I", struct.pack("<f", x))[0]
    e(f"  v_mov_b32 v16, {f2u(c0):#x}")
    e(f"  v_mov_b32 v17, {f2u(c0):#x}")
    e(f"  v_mov_b32 v18, {f2u(c1):#x}")
    e(f"  v_mov_b32 v19, {f2u(c1):#x}")
    e("  s_nop 3")
    n = 0
    for a in range(4):
        for p in range(2):
            dst = 184 + (n & 3) * 4; n += 1
            pairs = [(2 * p + tt, q) for tt in range(2) for q in range(2)]
            T = [152 + 4 * i for i in range(4)]
            def G(i): t, q = pairs[i]; return acc(0, t, a) + 2 * q
            def U(i): t, q = pairs[i]; return acc(1, t, a) + 2 * q
            for i in range(4): e(f"  v_pk_mul_f32 v[{T[i]}:{T[i]+1}], v[{G(i)}:{G(i)+1}], v[{G(i)}:{G(i)+1}]")
            for i in range(4): e(f"  v_pk_fma_f32 v[{T[i]}:{T[i]+1}], v[{T[i]}:{T[i]+1}], v[18:19], v[16:17]")
            for i in range(4): e(f"  v_pk_mul_f32 v[{T[i]}:{T[i]+1}], v[{T[i]}:{T[i]+1}], v[{G(i)}:{G(i)+1}]")
            for i in range(4):
                e(f"  v_exp_f32 v{T[i]}, v{T[i]}")
                e(f"  v_exp_f32 v{T[i]+1}, v{T[i]+1}")
            for i in range(4): e(f"  v_pk_mul_f32 v[{T[i]+2}:{T[i]+3}], v[{G(i)}:{G(i)+1}], v[{U(i)}:{U(i)+1}]")
            for i in range(4): e(f"  v_pk_add_f32 v[{T[i]}:{T[i]+1}], v[{T[i]}:{T[i]+1}], 1.0 op_sel_hi:[1,0]")
            for i in range(4):
                e(f"  v_rcp_f32 v{T[i]}, v{T[i]}")
                e(f"  v_rcp_f32 v{T[i]+1}, v{T[i]+1}")
            e("  s_nop 0")
            for i in range(4): e(f"  v_pk_mul_f32 v[{T[i]}:{T[i]+1}], v[{T[i]}:{T[i]+1}], v[{T[i]+2}:{T[i]+3}]")
            for i in range(4): e(f"  v_cvt_pk_bf16_f32 v{dst + i}, v{T[i]}, v{T[i]+1}")
            e(f"  s_add_u32 s43, s42, {a * KB2 * 1024 + p * 1024}")
            e(f"  buffer_store_dwordx4 v[{dst}:{dst+3}], v20, s[28:31], s43 offen {STFLAG}")
    stamp()
    if INSTR: e("  s_waitcnt vmcnt(0)")
    stamp()
    stamp_flush(160, "L1_dbg")
    wg_times(160, "L1_wt", 0)
    e("  s_endpgm")

    e("L1_transposer:")
    e("  s_waitcnt lgkmcnt(0)")
    e("  s_mov_b32 s28, s12")
    e("  s_and_b32 s29, s13, 0xffff")
    e(f"  s_mov_b32 s30, {WS_USED}")
    e("  s_mov_b32 s31, 0x00020000")
    e("  s_lshl_b32 s18, s14, 2")
    e("  s_add_u32 s18, s18, s15")
    e("  s_sub_u32 s18, s18, 28")
    e("  s_lshl_b32 s19, s14, 3")
    e("  s_add_u32 s19, s19, s15")
    e("  s_sub_u32 s19, s19, 48")
    e("  s_cmp_lt_u32 s14, 6")
    e("  s_cselect_b32 s18, s18, s19")
    e("  s_mov_b32 s20, s10")
    e("  s_and_b32 s21, s11, 0xffff")
    e(f"  s_mov_b32 s22, {F * D * 2}")
    e("  s_mov_b32 s23, 0x00020000")
    e("  s_mul_i32 s33, s32, 160")
    e("  s_mov_b32 s34, 52429")
    for q in range(5):
        e(f"  v_add_u32 v20, {q * 64}, v1")
        e("  v_mul_lo_u32 v21, v20, s34")
        e("  v_lshrrev_b32 v21, 19, v21")
        e("  v_mul_u32_u24 v22, 10, v21")
        e("  v_sub_u32 v22, v20, v22")
        e("  v_mul_u32_u24 v21, 1280, v21")
        e("  v_lshlrev_b32 v22, 4, v22")
        e(f"  v_add3_u32 v{2 + q}, v21, v22, s33")
    e("  v_lshrrev_b32 v21, 2, v1")
    e("  v_mul_u32_u24 v21, 160, v21")
    e("  v_and_b32 v22, 3, v1")
    e("  v_lshlrev_b32 v22, 3, v22")
    e("  s_mul_i32 s35, s32, 10240")
    e("  v_add3_u32 v7, v21, v22, s35")
    e("  v_lshlrev_b32 v8, 4, v1")
    e("L1_tr_loop:")
    e("  s_mul_i32 s37, s18, 40960")
    for i in range(2):
        e(f"  s_add_u32 s36, s37, {i * 640}")
        for q in range(5):
            e(f"  s_add_u32 m0, s35, {i * 5120 + q * 1024}")
            e("  s_nop 0")
            e(f"  buffer_load_dwordx4 v{2 + q}, s[20:23], s36 offen lds")
    e("  s_waitcnt vmcnt(0)")
    for i in range(2):
        for t in range(5):
            for h in range(2):
                r = 24 + (i * 5 + t) * 4 + h * 2
                e(f"  ds_read_b64_tr_b16 v[{r}:{r+1}], v7 offset:{i * 5120 + h * 2560 + t * 32}")
    e(f"  s_mul_i32 s38, s32, {5 * KB2}")
    e("  s_add_u32 s38, s38, s18")
    e("  s_lshl_b32 s38, s38, 10")
    e("  s_waitcnt lgkmcnt(0)")
    for i in range(2):
        for t in range(5):
            r = 24 + (i * 5 + t) * 4
            e(f"  s_add_u32 s39, s38, {WDT_OFF + (i * 20 + t) * KB2 * 1024}")
            e(f"  buffer_store_dwordx4 v[{r}:{r+3}], v8, s[28:31], s39 offen {STFLAG}")
    e("  s_waitcnt vmcnt(0)")
    e("  s_add_u32 s18, s18, 40")
    e(f"  s_cmp_lt_u32 s18, {KB2}")
    e("  s_cbranch_scc1 L1_tr_loop")
    wg_times(80, "L1_wt2", 0)
    e("L1_end:")
    e("  s_endpgm")


def k2():
    DEPTH = 4
    NB = 14
    ACC = 16
    def acc(tn, a): return ACC + (a * 5 + tn) * 4
    RING = 96
    def hf(slot, a): return RING + slot * 36 + a * 4
    def wfr(slot, tn): return RING + slot * 36 + 16 + tn * 4

    e("standalone__geglu_ffn__prompt_k2_kernel:")
    e("  s_cmp_ge_u32 s2, 256")
    e("  s_cbranch_scc1 L2_end")
    stamp_reset()
    if INSTR: e("  s_memrealtime s[62:63]")
    stamp()
    e("  s_load_dwordx2 s[4:5], s[0:1], 32")
    e("  s_load_dwordx2 s[6:7], s[0:1], 48")
    e("  v_lshrrev_b32 v2, 6, v0")
    e("  v_and_b32 v1, 63, v0")
    e("  s_and_b32 s14, s2, 7")
    e("  s_lshr_b32 s15, s2, 3")
    e("  v_readfirstlane_b32 s32, v2")
    e("  s_and_b32 s16, s14, 1")
    e("  s_lshl_b32 s16, s16, 2")
    e("  s_and_b32 s17, s15, 3")
    e("  s_add_u32 s16, s16, s17")
    e("  s_lshr_b32 s17, s14, 1")
    e("  s_lshl_b32 s17, s17, 3")
    e("  s_lshr_b32 s18, s15, 2")
    e("  s_add_u32 s17, s17, s18")
    e("  s_mul_i32 s18, s32, 14")
    e("  s_cmp_eq_u32 s32, 3")
    e("  s_cselect_b32 s19, 1, 0")
    e("  s_sub_u32 s18, s18, s19")
    for a in range(4):
        e(f"  s_add_u32 s19, s32, {a}")
        e("  s_and_b32 s19, s19, 3")
        e("  s_lshl_b32 s20, s17, 2")
        e("  s_add_u32 s19, s19, s20")
        e(f"  s_mul_i32 s19, s19, {KB2}")
        e("  s_add_u32 s19, s19, s18")
        e(f"  s_lshl_b32 s{40 + a}, s19, 10")
    for tn in range(5):
        e("  s_mul_i32 s19, s16, 5")
        e(f"  s_add_u32 s19, s19, {tn}")
        e(f"  s_mul_i32 s19, s19, {KB2}")
        e("  s_add_u32 s19, s19, s18")
        e("  s_lshl_b32 s19, s19, 10")
        e(f"  s_add_u32 s{44 + tn}, s19, {WDT_OFF}")
    e("  v_lshlrev_b32 v3, 4, v1")
    e("  s_waitcnt lgkmcnt(0)")
    e("  s_mov_b32 s8, s6")
    e("  s_and_b32 s9, s7, 0xffff")
    e(f"  s_mov_b32 s10, {WS_USED}")
    e("  s_mov_b32 s11, 0x00020000")
    e("  s_mov_b32 s24, s4")
    e("  s_and_b32 s25, s5, 0xffff")
    e(f"  s_mov_b32 s26, {M * D * 2}")
    e("  s_mov_b32 s27, 0x00020000")

    def loads(b):
        slot = b % DEPTH
        L = []
        pre = []
        if b == NB - 1:
            pre.append("  s_cmp_lt_u32 s32, 2")
            pre.append("  s_cselect_b32 s50, s50, 0x40000000")
        for tn in range(5):
            r = wfr(slot, tn)
            L.append(f"  s_add_u32 s{52 + (tn & 1)}, s{44 + tn}, s50")
            L.append(f"  buffer_load_dwordx4 v[{r}:{r+3}], v3, s[8:11], s{52 + (tn & 1)} offen {LD2}")
        for a in range(4):
            r = hf(slot, a)
            L.append(f"  s_add_u32 s{52 + (a & 1)}, s{40 + a}, s50")
            L.append(f"  buffer_load_dwordx4 v[{r}:{r+3}], v3, s[8:11], s{52 + (a & 1)} offen {LD2}")
        post = ["  s_add_u32 s50, s50, 1024", "  s_cmp_eq_u32 s50, s51", "  s_cselect_b32 s50, 0, s50"]
        return pre, L, post

    e("  s_cmp_lt_u32 s32, 2")
    e("  s_cselect_b32 s51, 14, 13")
    e("  s_lshl_b32 s51, s51, 10")
    if ROT == 1:
        e("  s_and_b32 s50, s15, 3")
        e("  s_mul_i32 s50, s50, 3")
        e("  s_lshr_b32 s52, s15, 2")
        e("  s_mul_i32 s52, s52, 5")
        e("  s_add_u32 s50, s50, s52")
        for _ in range(3):
            e("  s_cmp_ge_u32 s50, 13")
            e("  s_cselect_b32 s52, 13, 0")
            e("  s_sub_u32 s50, s50, s52")
        e("  s_lshl_b32 s50, s50, 10")
    else:
        e("  s_mov_b32 s50, 0")
    for b in range(DEPTH):
        pre, L, post = loads(b)
        for l in pre + L + post: e(l)
    for i in range(80):
        e(f"  v_mov_b32 v{ACC + i}, 0")
    for a in range(1, 4):
        e(f"  s_add_u32 s19, s32, {a}")
        e("  s_and_b32 s19, s19, 3")
        e("  s_mul_i32 s19, s19, 15360")
        e(f"  s_add_u32 s19, s19, {(a - 1) * 5120}")
        e(f"  v_add_u32 v{3 + a}, s19, v3")
    e("  s_mul_i32 s19, s32, 15360")
    e("  v_add_u32 v7, s19, v3")

    for b in range(NB):
        slot = b % DEPTH
        nout = (min(b + DEPTH - 1, NB - 1) - b) * 9
        e(f"  s_waitcnt vmcnt({nout})")
        if b % 2 == 0: stamp()
        def mfa(a):
            L = []
            for tn in range(5):
                c = acc(tn, a); w = wfr(slot, tn); h = hf(slot, a)
                L.append(f"  v_mfma_f32_16x16x32_bf16 v[{c}:{c+3}], v[{w}:{w+3}], v[{h}:{h+3}], v[{c}:{c+3}]")
            return L
        def wr(a):
            return [f"  ds_write_b128 v{3 + a}, v[{acc(tn, a)}:{acc(tn, a)+3}] offset:{tn * 1024}" for tn in range(5)]
        if b < NB - 1:
            for a in range(4):
                for l in mfa(a): e(l)
        else:
            for l in mfa(1) + mfa(2): e(l)
            for l in interleave(mfa(3), wr(1)): e(l)
            for l in interleave(mfa(0), wr(2)): e(l)
            e("  s_nop 4")
            for l in wr(3): e(l)
        if b + DEPTH < NB:
            pre, L, post = loads(b + DEPTH)
            for l in pre + L + post: e(l)
        if b == 2:
            e("  v_and_b32 v8, 15, v1")
            e("  v_lshrrev_b32 v9, 4, v1")
            e("  s_lshl_b32 s19, s17, 6")
            e("  s_lshl_b32 s20, s32, 4")
            e("  s_add_u32 s19, s19, s20")
            e("  v_add_u32 v8, s19, v8")
            e("  v_mul_u32_u24 v8, 1280, v8")
            e("  s_mul_i32 s19, s16, 160")
            e("  v_add_u32 v8, s19, v8")
            e("  v_and_b32 v10, 1, v9")
            e("  v_lshlrev_b32 v10, 5, v10")
            e("  v_lshrrev_b32 v11, 1, v9")
            e("  v_lshl_add_u32 v10, v11, 4, v10")
            e("  v_add_u32 v10, v8, v10")
            e("  v_lshl_add_u32 v11, v9, 3, v8")
    stamp()
    e("  s_waitcnt lgkmcnt(0)")
    e("  s_barrier")
    for tn in range(5):
        for r in range(3):
            t = RING + (r * 5 + tn) * 4
            e(f"  ds_read_b128 v[{t}:{t+3}], v7 offset:{r * 5120 + tn * 1024}")
    for tn in range(5):
        c = acc(tn, 0)
        e(f"  s_waitcnt lgkmcnt({3 * (4 - tn)})")
        t0, t1, t2 = [RING + (r * 5 + tn) * 4 for r in range(3)]
        for i in (0, 2):
            e(f"  v_pk_add_f32 v[{c+i}:{c+i+1}], v[{c+i}:{c+i+1}], v[{t0+i}:{t0+i+1}]")
            e(f"  v_pk_add_f32 v[{t1+i}:{t1+i+1}], v[{t1+i}:{t1+i+1}], v[{t2+i}:{t2+i+1}]")
        for i in (0, 2):
            e(f"  v_pk_add_f32 v[{c+i}:{c+i+1}], v[{c+i}:{c+i+1}], v[{t1+i}:{t1+i+1}]")
    P = 200
    for tn in range(5):
        c = acc(tn, 0)
        e(f"  v_cvt_pk_bf16_f32 v{P + tn * 2}, v{c}, v{c + 1}")
        e(f"  v_cvt_pk_bf16_f32 v{P + tn * 2 + 1}, v{c + 2}, v{c + 3}")
    e("  s_nop 1")
    for p in range(2):
        r = P + p * 4
        e(f"  v_permlane16_swap_b32 v{r}, v{r + 2}")
        e(f"  v_permlane16_swap_b32 v{r + 1}, v{r + 3}")
    e("  s_nop 1")
    for p in range(2):
        r = P + p * 4
        e(f"  buffer_store_dwordx4 v[{r}:{r+3}], v10, s[24:27], 0 offen offset:{p * 64}")
    e(f"  buffer_store_dwordx2 v[{P + 8}:{P + 9}], v11, s[24:27], 0 offen offset:128")
    stamp()
    if INSTR: e("  s_waitcnt vmcnt(0)")
    stamp()
    stamp_flush(220, "L2_dbg")
    wg_times(220, "L2_wt", 1)
    e("L2_end:")
    e("  s_endpgm")


HEADER = """; Kernarg layout for this problem (56 bytes, ptrs only, base s[0:1]):
; @launch kernel=standalone__geglu_ffn__prompt_k1_kernel grid=(256,1,1) block=(512,1,1) lds=147456
; @launch kernel=standalone__geglu_ffn__prompt_k2_kernel grid=(256,1,1) block=(256,1,1) lds=61440
.amdgcn_target "amdgcn-amd-amdhsa--gfx950"
.text
"""

def kd(name, vgpr, sgpr=102, agpr=0):
    acc = (vgpr + 3) // 4 * 4
    if agpr: vgpr = acc + agpr
    return f""".amdhsa_kernel {name}
  .amdhsa_next_free_vgpr {vgpr}
  .amdhsa_next_free_sgpr {sgpr}
  .amdhsa_accum_offset {acc}
  .amdhsa_group_segment_fixed_size 0
  .amdhsa_kernarg_size 56
  .amdhsa_user_sgpr_count 2
  .amdhsa_user_sgpr_kernarg_segment_ptr 1
  .amdhsa_system_sgpr_workgroup_id_x 1
  .amdhsa_float_denorm_mode_32 3
.end_amdhsa_kernel
"""

def main():
    hdr = HEADER.rstrip("\n").replace("block=(512,1,1)", "block=(576,1,1)" if PW else "block=(512,1,1)")
    if V4: hdr = hdr.replace("block=(512,1,1) lds=147456", "block=(256,1,1) lds=98304")
    e(hdr)
    for name, fn in (("standalone__geglu_ffn__prompt_k1_kernel", k1v4 if V4 else k1), ("standalone__geglu_ffn__prompt_k2_kernel", k2)):
        e(f".globl {name}")
        e(".p2align 8")
        e(f".type {name},@function")
        fn()
    e('.section .rodata,"a"')
    e(".p2align 6")
    e(kd("standalone__geglu_ffn__prompt_k1_kernel", 216, agpr=160) if V4 else kd("standalone__geglu_ffn__prompt_k1_kernel", 168))
    e(".p2align 6")
    e(kd("standalone__geglu_ffn__prompt_k2_kernel", 240))
    path = sys.argv[1] if len(sys.argv) > 1 else "standalone__geglu_ffn__prompt.s"
    open(path, "w").write("\n".join(out) + "\n")

main()
```

```python
import sys

M, D, F = 2048, 640, 1728
KB2 = F // 32
H_BYTES = M * F * 2
WDT_OFF = 8 << 20
WDT_BYTES = F * D * 2
WS_USED = WDT_OFF + WDT_BYTES

out = []
import os
INSTR = int(os.environ.get("INSTR", "0"))
DBG_WG = int(os.environ.get("DBG_WG", "0"))
STFLAG = os.environ.get("STFLAG", "sc1")
ROT = int(os.environ.get("ROT", "2"))
EXP = os.environ.get("EXP", "")
PF = int(os.environ.get("PF", "0"))
PW = int(os.environ.get("PW", "0"))
LD1 = os.environ.get("LD1", "")
V4 = int(os.environ.get("V4", "0"))
V6 = int(os.environ.get("V6", "0"))
TRPH = int(os.environ.get("TRPH", "0"))
LD2 = os.environ.get("LD2", "")
def e(s=""):
    out.append(s)
_nst = [0]
def stamp_reset():
    _nst[0] = 0
def stamp():
    if not INSTR: return
    i = _nst[0]; _nst[0] += 1
    e(f"  s_memtime s[{64 + 2*i}:{65 + 2*i}]")
def wg_times(vt, label, kidx):
    if not INSTR: return
    e("  s_memrealtime s[60:61]")
    e("  s_cmp_lg_u32 s32, 0")
    e(f"  s_cbranch_scc1 {label}")
    e("  s_load_dwordx2 s[96:97], s[0:1], 48")
    e("  s_waitcnt lgkmcnt(0)")
    e("  s_and_b32 s97, s97, 0xffff")
    e("  s_mov_b32 s98, 0x4000000")
    e("  s_mov_b32 s99, 0x00020000")
    e("  s_lshl_b32 s59, s2, 3")
    e(f"  s_add_u32 s59, s59, {(32 << 20) + kidx * 65536}")
    e(f"  v_mov_b32 v{vt}, 0")
    e(f"  v_mov_b32 v{vt + 2}, s62")
    e(f"  v_mov_b32 v{vt + 3}, s60")
    e(f"  buffer_store_dwordx2 v[{vt + 2}:{vt + 3}], v{vt}, s[96:99], s59 offen")
    e(f"{label}:")
def stamp_flush(vt, label):
    if not INSTR: return
    n = _nst[0]
    e(f"  s_memrealtime s[{64 + 2*n}:{65 + 2*n}]")
    e(f"  s_cmp_lg_u32 s2, {DBG_WG}")
    e(f"  s_cbranch_scc1 {label}")
    e("  s_cmp_lg_u32 s32, 0")
    e(f"  s_cbranch_scc1 {label}")
    e("  s_load_dwordx2 s[96:97], s[0:1], 40")
    e("  s_waitcnt lgkmcnt(0)")
    e("  s_and_b32 s97, s97, 0xffff")
    e("  s_mov_b32 s98, 256")
    e("  s_mov_b32 s99, 0x00020000")
    e(f"  v_mov_b32 v{vt}, 0")
    for i in range(n + 1):
        e(f"  v_mov_b32 v{vt + 1}, s{64 + 2*i}")
        e(f"  buffer_store_dword v{vt + 1}, v{vt}, s[96:99], 0 offen offset:{4 * i}")
    e(f"  v_mov_b32 v{vt + 1}, s62")
    e(f"  buffer_store_dword v{vt + 1}, v{vt}, s[96:99], 0 offen offset:{4 * (n + 1)}")
    e(f"{label}:")

def interleave(main, others, lead=0):
    res = []
    others = list(others)
    res += others[:lead]
    others = others[lead:]
    n, k = len(main), len(others)
    if n == 0:
        return res + others
    j = 0
    for i, m in enumerate(main):
        res.append(m)
        tgt = ((i + 1) * k) // n
        while j < tgt:
            res.append(others[j]); j += 1
    res += others[j:]
    return res

STAGE = 49152
NST = D // 64

def k1():
    ACC = 40
    def acc(mat, tt, a): return ACC + ((mat * 2 + tt) * 4 + a) * 4
    FR = {0: 104, 1: 136}
    def xf(s, a): return FR[s] + a * 4
    def wf(s, mat, tt): return FR[s] + 16 + (mat * 2 + tt) * 4
    vXe, vXo, vWe, vWo = 2, 3, 4, 5
    def vRXb(s): return 8 + s
    def vRWb(tt): return 10 + tt
    def vRX(s): return 12 + s
    def vRW(tt): return 14 + tt

    e("standalone__geglu_ffn__prompt_k1_kernel:")
    e("  s_cmp_ge_u32 s2, 256")
    e("  s_cbranch_scc1 L1_end")
    stamp_reset()
    if INSTR: e("  s_memrealtime s[62:63]")
    stamp()
    e("  s_load_dwordx8 s[4:11], s[0:1], 0")
    e("  s_load_dwordx2 s[12:13], s[0:1], 48")
    e("  v_lshrrev_b32 v20, 6, v0")
    e("  v_and_b32 v1, 63, v0")
    e("  s_and_b32 s14, s2, 7")
    e("  s_lshr_b32 s15, s2, 3")
    e("  v_readfirstlane_b32 s32, v20")
    e("  s_lshr_b32 s16, s14, 1")
    e("  s_cmp_eq_u32 s16, 3")
    e("  s_cselect_b32 s17, 24, 28")
    e("  v_lshrrev_b32 v20, 3, v1")
    e("  v_and_b32 v21, 7, v1")
    e("  v_lshrrev_b32 v22, 4, v1")
    e("  v_xor_b32 v23, v21, v22")
    e("  v_lshlrev_b32 v23, 4, v23")
    e("  v_mul_u32_u24 v24, 1280, v20")
    e("  s_mul_i32 s40, s32, 40960")
    e("  v_add3_u32 v2, v24, v23, s40")
    e("  v_xor_b32 v3, 64, v2")
    e("  v_and_b32 v23, 1, v22")
    e("  v_lshlrev_b32 v23, 1, v23")
    e("  v_xor_b32 v23, v21, v23")
    e("  v_lshlrev_b32 v23, 4, v23")
    e("  v_mul_u32_u24 v24, 3456, v20")
    e("  v_add_u32 v4, v24, v23")
    e("  v_xor_b32 v5, 64, v4")
    e("  s_and_b32 s18, s14, 1")
    e("  s_lshl_b32 s18, s18, 2")
    e("  s_and_b32 s19, s15, 3")
    e("  s_add_u32 s18, s18, s19")
    e("  s_mul_i32 s19, s16, 7")
    e("  s_lshr_b32 s33, s15, 2")
    e("  s_add_u32 s19, s19, s33")
    e("  s_and_b32 s33, s32, 1")
    e("  s_mul_i32 s34, s18, 327680")
    e("  s_lshr_b32 s35, s32, 1")
    e("  s_mul_i32 s36, s35, 55296")
    e("  s_lshl_b32 s37, s19, 7")
    e("  s_add_u32 s36, s36, s37")
    e("  s_lshl_b32 s38, s32, 12")
    e("  s_lshl_b32 s39, s33, 13")
    e("  s_lshl_b32 s40, s35, 11")
    e("  s_add_u32 s39, s39, s40")
    e("  s_add_u32 s39, s39, 32768")
    if ROT:
        if ROT == 2:
            e("  s_lshl_b32 s52, s16, 1")
            e("  s_and_b32 s53, s14, 1")
            e("  s_mul_i32 s53, s53, 5")
            e("  s_add_u32 s52, s52, s53")
        else:
            e("  s_lshr_b32 s52, s15, 2")
            e("  s_mul_i32 s52, s52, 3")
            e("  s_and_b32 s53, s15, 3")
            e("  s_lshl_b32 s53, s53, 1")
            e("  s_add_u32 s52, s52, s53")
        for _ in range(2):
            e("  s_cmp_ge_u32 s52, 10")
            e("  s_cselect_b32 s53, 10, 0")
            e("  s_sub_u32 s52, s52, s53")
        e(f"  s_mov_b32 s55, {(-9 * 128) & 0xffffffff:#x}")
        e("  s_movk_i32 s56, 128")
        e(f"  s_mov_b32 s57, {(-9 * 64 * 3456) & 0xffffffff:#x}")
        e(f"  s_mov_b32 s58, {64 * 3456}")
        e("  s_lshl_b32 s53, s52, 7")
        e("  s_add_u32 s34, s34, s53")
        e(f"  s_mul_i32 s53, s52, {64 * 3456}")
        e("  s_add_u32 s36, s36, s53")
    e(f"  s_mov_b32 s22, {M * D * 2}")
    e("  s_mov_b32 s23, 0x00020000")
    e(f"  s_mov_b32 s26, {D * F * 2}")
    e("  s_mov_b32 s27, 0x00020000")
    e("  s_cmp_eq_u32 s33, 0")
    e("  s_waitcnt lgkmcnt(0)")
    e("  s_cselect_b32 s24, s6, s8")
    e("  s_cselect_b32 s25, s7, s9")
    e("  s_mov_b32 s20, s4")
    e("  s_and_b32 s21, s5, 0xffff")
    e("  s_and_b32 s25, s25, 0xffff")
    PD = int(os.environ.get("PD", "5"))
    NPF = 2 * (PD - 2) if PF else 0
    def pf_setup():
        if not PF: return
        e("  s_lshr_b32 s42, s17, 2")
        e("  s_mul_i32 s42, s42, s32")
        e("  s_lshr_b32 s43, s15, 2")
        e("  s_add_u32 s42, s42, s43")
        e("  s_mul_i32 s43, s42, 10240")
        e("  s_mul_i32 s44, s32, 40960")
        e("  s_sub_u32 s43, s43, s44")
        e("  s_add_u32 s60, s34, s43")
        e("  s_cmp_lt_u32 s42, 32")
        e("  s_cselect_b32 s60, s60, 0x40000000")
        e("  s_and_b32 s42, s15, 3")
        e("  s_lshl_b32 s42, s42, 1")
        e("  s_add_u32 s42, s42, s35")
        e(f"  s_mul_i32 s42, s42, {8 * 3456}")
        e("  s_add_u32 s42, s42, s37")
        e(f"  s_add_u32 s61, s42, {2 * 64 * 3456}")
        e("  s_cmp_lt_u32 s32, 4")
        e("  s_cselect_b32 s61, s61, 0x40000000")
    def pf_stage():
        if not PF: return []
        return [f"  buffer_load_dwordx4 v[192:195], v{vXe}, s[20:23], s60 offen",
                f"  buffer_load_dwordx4 v[196:199], v{vWe}, s[24:27], s61 offen",
                "  s_add_u32 s60, s60, 128", f"  s_add_u32 s61, s61, {64 * 3456}"]
    def prefetch():
        pf_setup()
        for st in range(2, PD):
            for l in pf_stage(): e(l)
    TLB = int(os.environ.get("TLB", "0"))
    if TLB:
        e("  v_lshlrev_b32 v6, 12, v1")
        e("  s_lshl_b32 s42, s15, 2")
        e("  s_add_u32 s42, s42, s35")
        e("  s_mul_i32 s43, s42, 6554")
        e("  s_lshr_b32 s43, s43, 16")
        e("  s_mul_i32 s43, s43, 10")
        e("  s_sub_u32 s42, s42, s43")
        e("  s_lshl_b32 s42, s42, 18")
        e("  buffer_load_dword v104, v6, s[20:23], s42 offen")
        e("  buffer_load_dword v105, v6, s[24:27], s42 offen")
    WPF = int(os.environ.get("WPF", "0"))
    if WPF:
        e("  v_lshlrev_b32 v6, 4, v1")
        e("  s_lshl_b32 s43, s15, 2")
        e("  s_add_u32 s43, s43, s35")
        e(f"  s_mul_i32 s43, s43, {5 * 3456}")
        e("  s_mul_i32 s44, s16, 896")
        e("  s_add_u32 s43, s43, s44")
        for i in range(5):
            e(f"  buffer_load_dwordx4 v[{124 + 4*i}:{127 + 4*i}], v6, s[24:27], s43 offen")
            e("  s_add_u32 s43, s43, 3456")
        if WPF == 2: e("  s_waitcnt vmcnt(0)")
        stamp()
    XPF = int(os.environ.get("XPF", "0"))
    if XPF:
        e("  v_lshlrev_b32 v6, 4, v1")
        e("  s_and_b32 s42, s14, 1")
        e("  s_mul_i32 s42, s42, 1310720")
        e("  s_lshl_b32 s43, s15, 3")
        e("  s_add_u32 s43, s43, s32")
        e("  s_mul_i32 s43, s43, 5120")
        e("  s_add_u32 s42, s42, s43")
        for i in range(5):
            if i == 4: e("  s_add_u32 s42, s42, 4096")
            e(f"  buffer_load_dwordx4 v[{104 + 4*i}:{107 + 4*i}], v6, s[20:23], s42 offen offset:{(i & 3) * 1024}")
        if XPF == 2: e("  s_waitcnt vmcnt(0)")
        stamp()
    if PW:
        e("  s_cmp_eq_u32 s32, 8")
        e("  s_cbranch_scc1 L1_pfwave")
    if "pfwait" in EXP:
        stamp()
        e("  s_waitcnt vmcnt(0)")
        stamp()
        e("  s_barrier")
        stamp()
    e("  s_cmp_ge_u32 s15, s17")
    e("  s_cbranch_scc1 L1_transposer")

    def dma(wb):
        L = []
        for q in range(4):
            L.append(f"  s_add_u32 m0, s{50 + 0}, {q * 1024}")
            L.append(f"  s_add_u32 s{42 + (q & 1)}, s34, {q * 10240}")
            L.append(f"  buffer_load_dwordx4 v{vXo if q & 1 else vXe}, s[20:23], s{42 + (q & 1)} offen {LD1} lds")
        for o in range(2):
            L.append(f"  s_add_u32 m0, s{51}, {o * 1024}")
            L.append(f"  s_add_u32 s{42 + o}, s36, {8 * o * 3456}")
            L.append(f"  buffer_load_dwordx4 v{vWo if o else vWe}, s[24:27], s{42 + o} offen {LD1} lds")
        return L
    def dma_pre(wb):
        return [f"  s_add_u32 s50, s38, {wb}", f"  s_add_u32 s51, s39, {wb}"]
    def dma_post():
        if not ROT:
            return ["  s_add_u32 s34, s34, 128", f"  s_add_u32 s36, s36, {64 * 3456}"]
        return ["  s_add_u32 s52, s52, 1", "  s_cmp_eq_u32 s52, 10",
                "  s_cselect_b32 s52, 0, s52",
                "  s_cselect_b32 s53, s55, s56",
                "  s_cselect_b32 s54, s57, s58",
                "  s_add_u32 s34, s34, s53", "  s_add_u32 s36, s36, s54"]

    for st in range(2):
        for l in dma_pre(st * STAGE) + dma(0) + dma_post(): e(l)
    if "pfirst" not in EXP: prefetch()

    e("  s_mov_b32 s28, s12")
    e("  s_and_b32 s29, s13, 0xffff")
    e(f"  s_mov_b32 s30, {WS_USED}")
    e("  s_mov_b32 s31, 0x00020000")
    e("  s_and_b32 s40, s32, 3")
    e("  s_lshr_b32 s41, s32, 2")
    e("  v_and_b32 v20, 15, v1")
    e("  v_lshrrev_b32 v21, 4, v1")
    e("  v_lshrrev_b32 v22, 1, v20")
    e("  v_xor_b32 v22, v21, v22")
    e("  v_lshlrev_b32 v22, 4, v22")
    e("  v_lshlrev_b32 v23, 7, v20")
    e("  s_lshl_b32 s42, s40, 13")
    e(f"  v_add3_u32 v{vRXb(0)}, v22, v23, s42")
    e(f"  v_xor_b32 v{vRXb(1)}, 64, v{vRXb(0)}")
    e("  v_bfe_u32 v22, v1, 2, 2")
    e("  v_and_b32 v23, 3, v1")
    e("  v_lshrrev_b32 v24, 1, v22")
    e("  v_and_b32 v25, 1, v21")
    e("  v_lshl_add_u32 v24, v25, 1, v24")
    e("  v_lshl_add_u32 v25, v21, 3, v22")
    e("  v_lshlrev_b32 v25, 7, v25")
    e("  v_lshl_add_u32 v25, v23, 3, v25")
    e("  v_add_u32 v25, 32768, v25")
    e("  s_lshl_b32 s42, s41, 1")
    for tt in range(2):
        e(f"  s_add_u32 s43, s42, {tt}")
        e("  v_xor_b32 v26, s43, v24")
        e(f"  v_lshl_add_u32 v{vRWb(tt)}, v26, 5, v25")
    for i in range(64):
        e(f"  v_mov_b32 v{ACC + i}, 0")
    for i in range(32):
        e(f"  v_mov_b32 v{FR[1] + i}, 0")
    e(f"  s_mov_b32 s47, {2 * STAGE}")
    e("  s_mov_b32 s48, 0")
    e("  s_mov_b32 s49, 0")

    def reads(s):
        L = []
        if "nords" in EXP: return L
        for mat in range(2):
            for tt in range(2):
                for h in range(2):
                    r = wf(s, mat, tt) + 2 * h
                    L.append(f"  ds_read_b64_tr_b16 v[{r}:{r+1}], v{vRW(tt)} offset:{mat * 8192 + s * 4096 + h * 512}")
        for a in range(4):
            r = xf(s, a)
            L.append(f"  ds_read_b128 v[{r}:{r+3}], v{vRX(s)} offset:{a * 2048}")
        return L

    def mfmas(s):
        L = []
        for a in range(4):
            for mat in range(2):
                for tt in range(2):
                    c = acc(mat, tt, a)
                    w = wf(s, mat, tt); x = xf(s, a)
                    L.append(f"  v_mfma_f32_16x16x32_bf16 v[{c}:{c+3}], v[{w}:{w+3}], v[{x}:{x+3}], v[{c}:{c+3}]")
        return L

    stamp()
    late_pf = NPF
    PFI = 2 if PF else 0
    e(f"  s_waitcnt vmcnt({6 + late_pf})")
    def body(endwait):
        if "nobar" not in EXP: e("  s_barrier")
        for s_ in range(2):
            e(f"  v_add_u32 v{vRX(s_)}, s48, v{vRXb(s_)}")
            e(f"  v_add_u32 v{vRW(s_)}, s48, v{vRWb(s_)}")
        pre = dma_pre("s47") + [f"  s_cmp_lt_u32 s49, {NST - 2}",
                                "  s_cselect_b32 s34, s34, 0x40000000",
                                "  s_cselect_b32 s36, s36, 0x40000000"]
        dm = dma(0)
        if "nodma" in EXP: dm = []
        if "late" in EXP:
            oth = reads(0)
            dmB = pre + dm + dma_post()
        elif "spread" in EXP:
            oth = reads(0) + pre + dm[:9]
            dmB = dm[9:] + dma_post()
        else:
            pfl = []
            if PF:
                pfl = [f"  s_cmp_lt_u32 s49, {NST - PD}", "  s_cselect_b32 s60, s60, 0x40000000",
                       "  s_cselect_b32 s61, s61, 0x40000000"] + pf_stage()
            oth = reads(0) + pre + dm + dma_post()
            dmB = pfl
        for l in interleave(mfmas(1), oth, lead=(12 if "front" in EXP else 4)): e(l)
        e("  s_waitcnt lgkmcnt(0)")
        post = [f"  s_add_u32 s47, s47, {STAGE}", f"  s_cmp_eq_u32 s47, {3 * STAGE}", "  s_cselect_b32 s47, 0, s47",
                f"  s_add_u32 s48, s48, {STAGE}", f"  s_cmp_eq_u32 s48, {3 * STAGE}", "  s_cselect_b32 s48, 0, s48",
                "  s_add_u32 s49, s49, 1"]
        for l in interleave(mfmas(0), reads(1) + dmB + post, lead=(12 if "front" in EXP else 0)): e(l)
        e(f"  s_cmp_lt_u32 s49, {NST}")
        e(f"  s_waitcnt vmcnt({endwait}) lgkmcnt(0)")
    if late_pf:
        body(6 + late_pf + PFI)
    e("  .p2align 6")
    e("L1_loop:")
    body(6 + 2 * PFI)
    e("  s_cbranch_scc1 L1_loop")
    for l in mfmas(1): e(l)
    stamp()
    e("  s_lshl_b32 s42, s18, 4")
    e("  s_lshl_b32 s43, s40, 2")
    e("  s_add_u32 s42, s42, s43")
    e(f"  s_mul_i32 s42, s42, {KB2}")
    e("  s_lshl_b32 s43, s19, 1")
    e("  s_add_u32 s42, s42, s43")
    e("  s_add_u32 s42, s42, s41")
    e("  s_lshl_b32 s42, s42, 10")
    e("  v_lshlrev_b32 v20, 4, v1")
    import math, struct
    c0 = -2.0 * math.sqrt(2.0 / math.pi) * math.log2(math.e)
    c1 = c0 * 0.044715
    def f2u(x): return struct.unpack("<I", struct.pack("<f", x))[0]
    e(f"  v_mov_b32 v16, {f2u(c0):#x}")
    e(f"  v_mov_b32 v17, {f2u(c0):#x}")
    e(f"  v_mov_b32 v18, {f2u(c1):#x}")
    e(f"  v_mov_b32 v19, {f2u(c1):#x}")
    e("  s_nop 3")
    for a in range(4):
        dst = 24 + (a & 1) * 4
        pairs = [(tt, p) for tt in range(2) for p in range(2)]
        T = [104 + 4 * i for i in range(4)]
        def G(i): tt, p = pairs[i]; return acc(0, tt, a) + 2 * p
        def U(i): tt, p = pairs[i]; return acc(1, tt, a) + 2 * p
        for i in range(4): e(f"  v_pk_mul_f32 v[{T[i]}:{T[i]+1}], v[{G(i)}:{G(i)+1}], v[{G(i)}:{G(i)+1}]")
        for i in range(4): e(f"  v_pk_fma_f32 v[{T[i]}:{T[i]+1}], v[{T[i]}:{T[i]+1}], v[18:19], v[16:17]")
        for i in range(4): e(f"  v_pk_mul_f32 v[{T[i]}:{T[i]+1}], v[{T[i]}:{T[i]+1}], v[{G(i)}:{G(i)+1}]")
        for i in range(4):
            e(f"  v_exp_f32 v{T[i]}, v{T[i]}")
            e(f"  v_exp_f32 v{T[i]+1}, v{T[i]+1}")
        for i in range(4): e(f"  v_pk_mul_f32 v[{T[i]+2}:{T[i]+3}], v[{G(i)}:{G(i)+1}], v[{U(i)}:{U(i)+1}]")
        for i in range(4): e(f"  v_pk_add_f32 v[{T[i]}:{T[i]+1}], v[{T[i]}:{T[i]+1}], 1.0 op_sel_hi:[1,0]")
        for i in range(4):
            e(f"  v_rcp_f32 v{T[i]}, v{T[i]}")
            e(f"  v_rcp_f32 v{T[i]+1}, v{T[i]+1}")
        e("  s_nop 0")
        for i in range(4): e(f"  v_pk_mul_f32 v[{T[i]}:{T[i]+1}], v[{T[i]}:{T[i]+1}], v[{T[i]+2}:{T[i]+3}]")
        for i in range(4): e(f"  v_cvt_pk_bf16_f32 v{dst + i}, v{T[i]}, v{T[i]+1}")
        e(f"  s_add_u32 s43, s42, {a * KB2 * 1024}")
        if "nost" not in EXP: e(f"  buffer_store_dwordx4 v[{dst}:{dst+3}], v20, s[28:31], s43 offen {STFLAG}")
    stamp()
    if INSTR: e("  s_waitcnt vmcnt(0)")
    stamp()
    stamp_flush(120, "L1_dbg")
    wg_times(120, "L1_wt", 0)
    e("  s_endpgm")

    if PW:
        e("L1_pfwave:")
        e("  s_cmp_ge_u32 s15, s17")
        e("  s_cbranch_scc1 L1_end")
        e("  s_mov_b32 s24, s6")
        e("  s_and_b32 s25, s7, 0xffff")
        e("  s_mov_b32 s56, s8")
        e("  s_and_b32 s57, s9, 0xffff")
        e(f"  s_mov_b32 s58, {D * F * 2}")
        e("  s_mov_b32 s59, 0x00020000")
        e("  v_lshrrev_b32 v20, 3, v1")
        e("  v_and_b32 v21, 7, v1")
        e("  v_lshlrev_b32 v21, 4, v21")
        e("  v_mad_u32_u24 v6, v20, s101, v21") if False else None
        e("  v_mul_u32_u24 v6, 1280, v20")
        e("  v_add_u32 v6, v6, v21")
        e("  v_mul_u32_u24 v7, 3456, v20")
        e("  v_add_u32 v7, v7, v21")
        e("  s_lshr_b32 s47, s17, 2")
        e("  s_lshr_b32 s48, s15, 2")
        for i in range(5):
            e("  s_mul_i32 s49, s48, 10240")
            e(f"  s_add_u32 s{42 + i}, s34, s49")
            e(f"  s_add_u32 s{42 + i}, s{42 + i}, 256")
            e("  s_cmp_lt_u32 s48, 32")
            e(f"  s_cselect_b32 s{42 + i}, s{42 + i}, 0x40000000")
            e("  s_add_u32 s48, s48, s47")
        e("  s_and_b32 s50, s15, 3")
        e(f"  s_mul_i32 s50, s50, {16 * 3456}")
        e("  s_add_u32 s50, s50, s37")
        e(f"  s_add_u32 s50, s50, {128 * 3456}")
        def pstage():
            for i in range(5):
                e(f"  buffer_load_dwordx4 v[8:11], v6, s[20:23], s{42 + i} offen")
                e(f"  s_add_u32 s{42 + i}, s{42 + i}, 128")
            e(f"  s_add_u32 s51, s50, {8 * 3456}")
            e("  buffer_load_dwordx4 v[12:15], v7, s[24:27], s50 offen")
            e("  buffer_load_dwordx4 v[12:15], v7, s[56:59], s50 offen")
            e("  buffer_load_dwordx4 v[12:15], v7, s[24:27], s51 offen")
            e("  buffer_load_dwordx4 v[12:15], v7, s[56:59], s51 offen")
            e(f"  s_add_u32 s50, s50, {64 * 3456}")
        PWA = int(os.environ.get("PWA", "4"))
        nxt = 2
        for it in range(NST):
            n = PWA if it == 0 else 1
            for _ in range(n):
                if nxt < NST:
                    pstage(); nxt += 1
            e("  s_barrier")
        e("  s_endpgm")
    transposer8()


def transposer8():
    e("L1_transposer:")
    if "notr" in EXP: e("  s_endpgm")
    e("  s_mov_b32 s28, s12")
    e("  s_and_b32 s29, s13, 0xffff")
    e(f"  s_mov_b32 s30, {WS_USED}")
    e("  s_mov_b32 s31, 0x00020000")
    e("  s_lshl_b32 s18, s14, 2")
    e("  s_add_u32 s18, s18, s15")
    e("  s_sub_u32 s18, s18, 28")
    e("  s_lshl_b32 s19, s14, 3")
    e("  s_add_u32 s19, s19, s15")
    e("  s_sub_u32 s19, s19, 48")
    e("  s_cmp_lt_u32 s14, 6")
    e("  s_cselect_b32 s18, s18, s19")
    e("  s_mov_b32 s20, s10")
    e("  s_and_b32 s21, s11, 0xffff")
    e(f"  s_mov_b32 s22, {F * D * 2}")
    e("  s_mov_b32 s23, 0x00020000")
    e("  s_mul_i32 s33, s32, 160")
    e("  s_mov_b32 s34, 52429")
    for q in range(5):
        e(f"  v_add_u32 v20, {q * 64}, v1")
        e("  v_mul_lo_u32 v21, v20, s34")
        e("  v_lshrrev_b32 v21, 19, v21")
        e("  v_mul_u32_u24 v22, 10, v21")
        e("  v_sub_u32 v22, v20, v22")
        e("  v_mul_u32_u24 v21, 1280, v21")
        e("  v_lshlrev_b32 v22, 4, v22")
        e(f"  v_add3_u32 v{2 + q}, v21, v22, s33")
    e("  v_lshrrev_b32 v21, 2, v1")
    e("  v_mul_u32_u24 v21, 160, v21")
    e("  v_and_b32 v22, 3, v1")
    e("  v_lshlrev_b32 v22, 3, v22")
    e("  s_mul_i32 s35, s32, 5120")
    e("  v_add3_u32 v7, v21, v22, s35")
    e("  v_lshlrev_b32 v8, 4, v1")
    e("  s_mov_b32 s36, 0")
    e("L1_tr_loop:")
    e("  s_mul_i32 s37, s18, 40960")
    if TRPH:
        e("  s_cmp_lt_u32 s32, 4")
        e("  s_cbranch_scc1 L1_tr_a")
        e("  s_barrier")
        e("L1_tr_a:")
    for q in range(5):
        e(f"  s_add_u32 m0, s35, {q * 1024}")
        e("  s_nop 0")
        e(f"  buffer_load_dwordx4 v{2 + q}, s[20:23], s37 offen {LD1} lds")
    e("  s_waitcnt vmcnt(0)")
    if TRPH:
        e("  s_cmp_ge_u32 s32, 4")
        e("  s_cbranch_scc1 L1_tr_b")
        e("  s_barrier")
        e("L1_tr_b:")
    for t in range(5):
        for h in range(2):
            r = 24 + t * 4 + h * 2
            e(f"  ds_read_b64_tr_b16 v[{r}:{r+1}], v7 offset:{h * 2560 + t * 32}")
    e(f"  s_mul_i32 s38, s32, {5 * KB2}")
    e("  s_add_u32 s38, s38, s18")
    e("  s_lshl_b32 s38, s38, 10")
    e("  s_waitcnt lgkmcnt(0)")
    for t in range(5):
        r = 24 + t * 4
        e(f"  s_add_u32 s39, s38, {WDT_OFF + t * KB2 * 1024}")
        e(f"  buffer_store_dwordx4 v[{r}:{r+3}], v8, s[28:31], s39 offen {STFLAG}")
    e("  s_waitcnt vmcnt(0)")
    e("  s_add_u32 s18, s18, 40")
    e(f"  s_cmp_lt_u32 s18, {KB2}")
    e("  s_cbranch_scc1 L1_tr_loop")
    wg_times(40, "L1_wt2", 0)
    e("L1_end:")
    e("  s_endpgm")

def k1v6():
    XS = 2; WD = 6; WST = 16384; WBASE = 65536
    ACC = 40
    def acc(mat, tt, a): return ACC + ((mat * 2 + tt) * 4 + a) * 4
    FR = {0: 104, 1: 136}
    def xf(s, a): return FR[s] + a * 4
    def wf(s, mat, tt): return FR[s] + 16 + (mat * 2 + tt) * 4
    XR = 168
    def xr(slot, q): return XR + slot * 16 + q * 4
    vXe, vXo, vWe, vWo = 2, 3, 4, 5
    vXW = 6
    def vRX(s): return 8 + s
    def vRWb(tt): return 10 + tt
    def vRW(tt): return 14 + tt
    e("standalone__geglu_ffn__prompt_k1_kernel:")
    e("  s_cmp_ge_u32 s2, 256")
    e("  s_cbranch_scc1 L1_end")
    stamp_reset()
    if INSTR: e("  s_memrealtime s[62:63]")
    stamp()
    e("  s_load_dwordx8 s[4:11], s[0:1], 0")
    e("  s_load_dwordx2 s[12:13], s[0:1], 48")
    e("  v_lshrrev_b32 v20, 6, v0")
    e("  v_and_b32 v1, 63, v0")
    e("  s_and_b32 s14, s2, 7")
    e("  s_lshr_b32 s15, s2, 3")
    e("  v_readfirstlane_b32 s32, v20")
    e("  s_lshr_b32 s16, s14, 1")
    e("  s_cmp_eq_u32 s16, 3")
    e("  s_cselect_b32 s17, 24, 28")
    e("  v_lshrrev_b32 v20, 3, v1")
    e("  v_and_b32 v21, 7, v1")
    e("  v_lshrrev_b32 v22, 4, v1")
    e("  v_xor_b32 v23, v21, v22")
    e("  v_lshlrev_b32 v23, 4, v23")
    e("  v_mul_u32_u24 v24, 1280, v20")
    e("  s_mul_i32 s40, s32, 40960")
    e("  v_add3_u32 v2, v24, v23, s40")
    e("  v_xor_b32 v3, 64, v2")
    e("  v_and_b32 v23, 1, v22")
    e("  v_lshlrev_b32 v23, 1, v23")
    e("  v_xor_b32 v23, v21, v23")
    e("  v_lshlrev_b32 v23, 4, v23")
    e("  v_mul_u32_u24 v24, 3456, v20")
    e("  v_add_u32 v4, v24, v23")
    e("  v_xor_b32 v5, 64, v4")
    e("  s_and_b32 s18, s14, 1")
    e("  s_lshl_b32 s18, s18, 2")
    e("  s_and_b32 s19, s15, 3")
    e("  s_add_u32 s18, s18, s19")
    e("  s_mul_i32 s19, s16, 7")
    e("  s_lshr_b32 s33, s15, 2")
    e("  s_add_u32 s19, s19, s33")
    e("  s_and_b32 s33, s32, 1")
    e("  s_mul_i32 s34, s18, 327680")
    e("  s_lshr_b32 s35, s32, 1")
    e("  s_mul_i32 s36, s35, 55296")
    e("  s_lshl_b32 s37, s19, 7")
    e("  s_add_u32 s36, s36, s37")
    e("  s_lshl_b32 s39, s33, 13")
    e("  s_lshl_b32 s40, s35, 11")
    e("  s_add_u32 s39, s39, s40")
    e(f"  s_add_u32 s39, s39, {WBASE}")
    e("  s_lshl_b32 s52, s16, 1")
    e("  s_and_b32 s53, s14, 1")
    e("  s_mul_i32 s53, s53, 5")
    e("  s_add_u32 s52, s52, s53")
    e("  s_cmp_ge_u32 s52, 10")
    e("  s_cselect_b32 s53, 10, 0")
    e("  s_sub_u32 s52, s52, s53")
    e("  s_mov_b32 s59, s52")
    e(f"  s_mov_b32 s55, {(-9 * 128) & 0xffffffff:#x}")
    e("  s_movk_i32 s56, 128")
    e(f"  s_mov_b32 s57, {(-9 * 64 * 3456) & 0xffffffff:#x}")
    e(f"  s_mov_b32 s58, {64 * 3456}")
    e("  s_lshl_b32 s53, s52, 7")
    e("  s_add_u32 s34, s34, s53")
    e(f"  s_mul_i32 s53, s52, {64 * 3456}")
    e("  s_add_u32 s36, s36, s53")
    e(f"  s_mov_b32 s22, {M * D * 2}")
    e("  s_mov_b32 s23, 0x00020000")
    e(f"  s_mov_b32 s26, {D * F * 2}")
    e("  s_mov_b32 s27, 0x00020000")
    e("  s_cmp_eq_u32 s33, 0")
    e("  s_waitcnt lgkmcnt(0)")
    e("  s_cselect_b32 s24, s6, s8")
    e("  s_cselect_b32 s25, s7, s9")
    e("  s_mov_b32 s20, s4")
    e("  s_and_b32 s21, s5, 0xffff")
    e("  s_and_b32 s25, s25, 0xffff")
    e("  s_cmp_ge_u32 s15, s17")
    e("  s_cbranch_scc1 L1_transposer")

    def ldX(slot):
        L = []
        for q in range(4):
            L.append(f"  s_add_u32 s{42 + (q & 1)}, s34, {q * 10240}")
            r = xr(slot, q)
            L.append(f"  buffer_load_dwordx4 v[{r}:{r+3}], v{vXo if q & 1 else vXe}, s[20:23], s{42 + (q & 1)} offen")
        L += ["  s_add_u32 s52, s52, 1", "  s_cmp_eq_u32 s52, 10", "  s_cselect_b32 s52, 0, s52",
              "  s_cselect_b32 s53, s55, s56", "  s_add_u32 s34, s34, s53"]
        return L
    def wrX(slot):
        return [f"  ds_write_b128 v{vXW}, v[{xr(slot, q)}:{xr(slot, q)+3}] offset:{q * 1024}" for q in range(4)]
    def dmaW(wb):
        L = [f"  s_add_u32 s51, s39, {wb}"]
        for o in range(2):
            L.append(f"  s_add_u32 m0, s51, {o * 1024}")
            L.append(f"  s_add_u32 s{44 + o}, s36, {8 * o * 3456}")
            L.append(f"  buffer_load_dwordx4 v{vWo if o else vWe}, s[24:27], s{44 + o} offen lds")
        L += ["  s_add_u32 s59, s59, 1", "  s_cmp_eq_u32 s59, 10", "  s_cselect_b32 s59, 0, s59",
              "  s_cselect_b32 s54, s57, s58", "  s_add_u32 s36, s36, s54"]
        return L

    for l in dmaW(0) + ldX(0) + dmaW(WST) + ldX(1) + dmaW(2 * WST) + dmaW(3 * WST): e(l)
    e("  s_mov_b32 s28, s12")
    e("  s_and_b32 s29, s13, 0xffff")
    e(f"  s_mov_b32 s30, {WS_USED}")
    e("  s_mov_b32 s31, 0x00020000")
    e("  s_and_b32 s40, s32, 3")
    e("  s_lshr_b32 s41, s32, 2")
    e("  s_lshl_b32 s42, s32, 12")
    e(f"  v_lshl_add_u32 v{vXW}, v1, 4, s42")
    e("  v_and_b32 v20, 15, v1")
    e("  v_lshrrev_b32 v21, 4, v1")
    e("  v_lshrrev_b32 v22, 1, v20")
    e("  v_xor_b32 v22, v21, v22")
    e("  v_lshlrev_b32 v22, 4, v22")
    e("  v_lshlrev_b32 v23, 7, v20")
    e("  s_lshl_b32 s42, s40, 13")
    e(f"  v_add3_u32 v{vRX(0)}, v22, v23, s42")
    e(f"  v_xor_b32 v{vRX(1)}, 64, v{vRX(0)}")
    e("  v_bfe_u32 v22, v1, 2, 2")
    e("  v_and_b32 v23, 3, v1")
    e("  v_lshrrev_b32 v24, 1, v22")
    e("  v_and_b32 v25, 1, v21")
    e("  v_lshl_add_u32 v24, v25, 1, v24")
    e("  v_lshl_add_u32 v25, v21, 3, v22")
    e("  v_lshlrev_b32 v25, 7, v25")
    e("  v_lshl_add_u32 v25, v23, 3, v25")
    e(f"  v_add_u32 v25, {WBASE}, v25")
    e("  s_lshl_b32 s42, s41, 1")
    for tt in range(2):
        e(f"  s_add_u32 s43, s42, {tt}")
        e("  v_xor_b32 v26, s43, v24")
        e(f"  v_lshl_add_u32 v{vRWb(tt)}, v26, 5, v25")
    for i in range(64):
        e(f"  v_mov_b32 v{ACC + i}, 0")
    for i in range(32):
        e(f"  v_mov_b32 v{FR[1] + i}, 0")
    e(f"  s_mov_b32 s47, {5 * WST}")
    e("  s_mov_b32 s48, 0")
    e("  s_mov_b32 s49, 0")
    stamp()
    e("  s_waitcnt vmcnt(10)")
    for l in wrX(0): e(l)
    e(f"  v_xor_b32 v{vXW}, 0x8000, v{vXW}")
    for l in ldX(0) + dmaW(4 * WST): e(l)
    e("  s_waitcnt lgkmcnt(0)")

    def reads(s):
        L = []
        for mat in range(2):
            for tt in range(2):
                for h in range(2):
                    r = wf(s, mat, tt) + 2 * h
                    L.append(f"  ds_read_b64_tr_b16 v[{r}:{r+1}], v{vRW(tt)} offset:{mat * 8192 + s * 4096 + h * 512}")
        for a in range(4):
            r = xf(s, a)
            L.append(f"  ds_read_b128 v[{r}:{r+3}], v{vRX(s)} offset:{a * 2048}")
        return L
    def mfmas(s):
        L = []
        for a in range(4):
            for mat in range(2):
                for tt in range(2):
                    c = acc(mat, tt, a); w = wf(s, mat, tt); x = xf(s, a)
                    L.append(f"  v_mfma_f32_16x16x32_bf16 v[{c}:{c+3}], v[{w}:{w+3}], v[{x}:{x+3}], v[{c}:{c+3}]")
        return L
    e("  .p2align 6")
    e("L1_loop:")
    for u in range(XS):
        slot = (u + 1) % XS
        e("  s_barrier")
        for tt in range(2):
            e(f"  v_add_u32 v{vRW(tt)}, s48, v{vRWb(tt)}")
        oob = [f"  s_cmp_lt_u32 s49, {NST - 1 - XS}", "  s_cselect_b32 s34, s34, 0x40000000",
               f"  s_cmp_lt_u32 s49, {NST - 5}", "  s_cselect_b32 s36, s36, 0x40000000"]
        oth = reads(0) + [f"  s_waitcnt vmcnt({2 + 6 * (XS - 1)})"] + wrX(slot) + \
              [f"  v_xor_b32 v{vXW}, 0x8000, v{vXW}"] + oob + ldX(slot) + dmaW("s47")
        for l in interleave(mfmas(1), oth, lead=4): e(l)
        e("  s_waitcnt lgkmcnt(0)")
        post = [f"  s_add_u32 s47, s47, {WST}", f"  s_cmp_eq_u32 s47, {WD * WST}", "  s_cselect_b32 s47, 0, s47",
                f"  s_add_u32 s48, s48, {WST}", f"  s_cmp_eq_u32 s48, {WD * WST}", "  s_cselect_b32 s48, 0, s48",
                "  s_add_u32 s49, s49, 1"]
        for l in interleave(mfmas(0), reads(1) + post, lead=0): e(l)
        e("  s_waitcnt lgkmcnt(0)")
        for s_ in range(2):
            e(f"  v_xor_b32 v{vRX(s_)}, 0x8000, v{vRX(s_)}")
    e(f"  s_cmp_lt_u32 s49, {NST}")
    e("  s_cbranch_scc1 L1_loop")
    for l in mfmas(1): e(l)
    stamp()
    e("  s_lshl_b32 s42, s18, 4")
    e("  s_lshl_b32 s43, s40, 2")
    e("  s_add_u32 s42, s42, s43")
    e(f"  s_mul_i32 s42, s42, {KB2}")
    e("  s_lshl_b32 s43, s19, 1")
    e("  s_add_u32 s42, s42, s43")
    e("  s_add_u32 s42, s42, s41")
    e("  s_lshl_b32 s42, s42, 10")
    e("  v_lshlrev_b32 v20, 4, v1")
    import math, struct
    c0 = -2.0 * math.sqrt(2.0 / math.pi) * math.log2(math.e)
    c1 = c0 * 0.044715
    def f2u(x): return struct.unpack("<I", struct.pack("<f", x))[0]
    e(f"  v_mov_b32 v16, {f2u(c0):#x}")
    e(f"  v_mov_b32 v17, {f2u(c0):#x}")
    e(f"  v_mov_b32 v18, {f2u(c1):#x}")
    e(f"  v_mov_b32 v19, {f2u(c1):#x}")
    e("  s_nop 3")
    for a in range(4):
        dst = 24 + (a & 1) * 4
        pairs = [(tt, p) for tt in range(2) for p in range(2)]
        T = [104 + 4 * i for i in range(4)]
        def G(i): tt, p = pairs[i]; return acc(0, tt, a) + 2 * p
        def U(i): tt, p = pairs[i]; return acc(1, tt, a) + 2 * p
        for i in range(4): e(f"  v_pk_mul_f32 v[{T[i]}:{T[i]+1}], v[{G(i)}:{G(i)+1}], v[{G(i)}:{G(i)+1}]")
        for i in range(4): e(f"  v_pk_fma_f32 v[{T[i]}:{T[i]+1}], v[{T[i]}:{T[i]+1}], v[18:19], v[16:17]")
        for i in range(4): e(f"  v_pk_mul_f32 v[{T[i]}:{T[i]+1}], v[{T[i]}:{T[i]+1}], v[{G(i)}:{G(i)+1}]")
        for i in range(4):
            e(f"  v_exp_f32 v{T[i]}, v{T[i]}")
            e(f"  v_exp_f32 v{T[i]+1}, v{T[i]+1}")
        for i in range(4): e(f"  v_pk_mul_f32 v[{T[i]+2}:{T[i]+3}], v[{G(i)}:{G(i)+1}], v[{U(i)}:{U(i)+1}]")
        for i in range(4): e(f"  v_pk_add_f32 v[{T[i]}:{T[i]+1}], v[{T[i]}:{T[i]+1}], 1.0 op_sel_hi:[1,0]")
        for i in range(4):
            e(f"  v_rcp_f32 v{T[i]}, v{T[i]}")
            e(f"  v_rcp_f32 v{T[i]+1}, v{T[i]+1}")
        e("  s_nop 0")
        for i in range(4): e(f"  v_pk_mul_f32 v[{T[i]}:{T[i]+1}], v[{T[i]}:{T[i]+1}], v[{T[i]+2}:{T[i]+3}]")
        for i in range(4): e(f"  v_cvt_pk_bf16_f32 v{dst + i}, v{T[i]}, v{T[i]+1}")
        e(f"  s_add_u32 s43, s42, {a * KB2 * 1024}")
        e(f"  buffer_store_dwordx4 v[{dst}:{dst+3}], v20, s[28:31], s43 offen {STFLAG}")
    stamp()
    if INSTR: e("  s_waitcnt vmcnt(0)")
    stamp()
    stamp_flush(120, "L1_dbg")
    wg_times(120, "L1_wt", 0)
    e("  s_endpgm")
    transposer8()


def k1v4():
    WST = 16384; WD = 6; XD = 5
    ACC = 24
    def acc(mat, t, a): return ACC + ((mat * 4 + t) * 4 + a) * 4
    FR = {0: 152, 1: 184}
    def wf(s, mat, t): return FR[s] + (mat * 4 + t) * 4
    def xa(slot, s, a): return slot * 32 + (s * 4 + a) * 4
    vWe, vWo, vX = 2, 3, 4
    def vRWb(t): return 8 + t
    def vRW(t): return 12 + t
    e("standalone__geglu_ffn__prompt_k1_kernel:")
    e("  s_cmp_ge_u32 s2, 256")
    e("  s_cbranch_scc1 L1_end")
    stamp_reset()
    if INSTR: e("  s_memrealtime s[62:63]")
    stamp()
    e("  s_load_dwordx8 s[4:11], s[0:1], 0")
    e("  s_load_dwordx2 s[12:13], s[0:1], 48")
    e("  v_lshrrev_b32 v20, 6, v0")
    e("  v_and_b32 v1, 63, v0")
    e("  s_and_b32 s14, s2, 7")
    e("  s_lshr_b32 s15, s2, 3")
    e("  v_readfirstlane_b32 s32, v20")
    e("  s_lshr_b32 s16, s14, 1")
    e("  s_cmp_eq_u32 s16, 3")
    e("  s_cselect_b32 s17, 24, 28")
    e("  s_cmp_ge_u32 s15, s17")
    e("  s_cbranch_scc1 L1_transposer")
    e("  v_lshrrev_b32 v20, 3, v1")
    e("  v_and_b32 v21, 7, v1")
    e("  v_lshrrev_b32 v22, 4, v1")
    e("  v_and_b32 v23, 1, v22")
    e("  v_lshlrev_b32 v23, 1, v23")
    e("  v_xor_b32 v23, v21, v23")
    e("  v_lshlrev_b32 v23, 4, v23")
    e("  v_mul_u32_u24 v21, 3456, v20")
    e(f"  v_add_u32 v{vWe}, v21, v23")
    e(f"  v_xor_b32 v{vWo}, 64, v{vWe}")
    e("  v_and_b32 v20, 15, v1")
    e("  v_mul_u32_u24 v21, 1280, v20")
    e(f"  v_lshl_add_u32 v{vX}, v22, 4, v21")
    e("  s_and_b32 s18, s14, 1")
    e("  s_lshl_b32 s18, s18, 2")
    e("  s_and_b32 s19, s15, 3")
    e("  s_add_u32 s18, s18, s19")
    e("  s_mul_i32 s19, s16, 7")
    e("  s_lshr_b32 s33, s15, 2")
    e("  s_add_u32 s19, s19, s33")
    e("  s_and_b32 s33, s32, 1")
    e("  s_lshr_b32 s35, s32, 1")
    e("  s_mul_i32 s34, s18, 327680")
    e("  s_mul_i32 s40, s32, 81920")
    e("  s_add_u32 s34, s34, s40")
    e(f"  s_mul_i32 s36, s35, {32 * 3456}")
    e("  s_lshl_b32 s37, s19, 7")
    e("  s_add_u32 s36, s36, s37")
    e("  s_lshl_b32 s39, s33, 13")
    e("  s_lshl_b32 s40, s35, 12")
    e("  s_add_u32 s39, s39, s40")
    e(f"  s_mov_b32 s22, {M * D * 2}")
    e("  s_mov_b32 s23, 0x00020000")
    e(f"  s_mov_b32 s26, {D * F * 2}")
    e("  s_mov_b32 s27, 0x00020000")
    e("  s_cmp_eq_u32 s33, 0")
    e("  s_waitcnt lgkmcnt(0)")
    e("  s_cselect_b32 s24, s6, s8")
    e("  s_cselect_b32 s25, s7, s9")
    e("  s_mov_b32 s20, s4")
    e("  s_and_b32 s21, s5, 0xffff")
    e("  s_and_b32 s25, s25, 0xffff")

    def dmaW(wb):
        L = [f"  s_add_u32 s50, s39, {wb}"]
        for o in range(4):
            L.append(f"  s_add_u32 m0, s50, {o * 1024}")
            L.append(f"  s_add_u32 s{42 + (o & 1)}, s36, {8 * o * 3456}")
            L.append(f"  buffer_load_dwordx4 v{vWo if o & 1 else vWe}, s[24:27], s{42 + (o & 1)} offen lds")
        L.append(f"  s_add_u32 s36, s36, {64 * 3456}")
        return L
    def ldX(slot):
        L = []
        for a in range(4):
            L.append(f"  s_add_u32 s{44 + (a & 1)}, s34, {a * 20480}")
            for s_ in range(2):
                r = xa(slot, s_, a)
                L.append(f"  buffer_load_dwordx4 a[{r}:{r+3}], v{vX}, s[20:23], s{44 + (a & 1)} offen offset:{s_ * 64}")
        L.append("  s_add_u32 s34, s34, 128")
        return L
    for st in range(4):
        for l in dmaW(st * WST) + ldX(st): e(l)
    for l in dmaW(4 * WST): e(l)
    e("  s_mov_b32 s28, s12")
    e("  s_and_b32 s29, s13, 0xffff")
    e(f"  s_mov_b32 s30, {WS_USED}")
    e("  s_mov_b32 s31, 0x00020000")
    e("  v_lshrrev_b32 v21, 4, v1")
    e("  v_bfe_u32 v22, v1, 2, 2")
    e("  v_and_b32 v23, 3, v1")
    e("  v_lshrrev_b32 v16, 1, v22")
    e("  v_and_b32 v17, 1, v21")
    e("  v_lshl_add_u32 v16, v17, 1, v16")
    e("  v_lshl_add_u32 v17, v21, 3, v22")
    e("  v_lshlrev_b32 v17, 7, v17")
    e("  v_lshl_add_u32 v17, v23, 3, v17")
    for t in range(4):
        e(f"  v_xor_b32 v18, {t}, v16")
        e(f"  v_lshl_add_u32 v{vRWb(t)}, v18, 5, v17")
    for i in range(128):
        e(f"  v_mov_b32 v{ACC + i}, 0")
    e(f"  s_mov_b32 s47, {5 * WST}")
    e(f"  s_mov_b32 s48, {WST}")
    e("  s_mov_b32 s49, 0")

    def reads(s_, base):
        L = []
        for mat in range(2):
            for t in range(4):
                for h in range(2):
                    r = wf(s_, mat, t) + 2 * h
                    L.append(f"  ds_read_b64_tr_b16 v[{r}:{r+1}], v{base(t)} offset:{mat * 8192 + s_ * 4096 + h * 512}")
        return L
    def mfmas(s_, slot):
        L = []
        for a in range(4):
            for mat in range(2):
                for t in range(4):
                    c = acc(mat, t, a); w = wf(s_, mat, t); x = xa(slot, s_, a)
                    L.append(f"  v_mfma_f32_16x16x32_bf16 v[{c}:{c+3}], v[{w}:{w+3}], a[{x}:{x+3}], v[{c}:{c+3}]")
        return L
    stamp()
    e("  s_waitcnt vmcnt(40)")
    e("  s_barrier")
    for t in range(4): e(f"  v_mov_b32 v{vRW(t)}, v{vRWb(t)}")
    for l in reads(0, vRWb): e(l)
    e("  s_waitcnt lgkmcnt(0)")
    e("  .p2align 6")
    e("L1_loop:")
    for u in range(XD):
        oob = [f"  s_cmp_lt_u32 s49, {NST - 5}", "  s_cselect_b32 s36, s36, 0x40000000",
               f"  s_cmp_lt_u32 s49, {NST - 4}", "  s_cselect_b32 s34, s34, 0x40000000"]
        oth = reads(1, vRW) + oob + dmaW("s47") + ldX((u + 4) % XD)
        for l in interleave(mfmas(0, u), oth, lead=2): e(l)
        e("  s_waitcnt vmcnt(36) lgkmcnt(0)")
        e("  s_barrier")
        upd = [f"  v_add_u32 v{vRW(t)}, s48, v{vRWb(t)}" for t in range(4)]
        post = [f"  s_add_u32 s47, s47, {WST}", f"  s_cmp_eq_u32 s47, {WD * WST}", "  s_cselect_b32 s47, 0, s47",
                f"  s_add_u32 s48, s48, {WST}", f"  s_cmp_eq_u32 s48, {WD * WST}", "  s_cselect_b32 s48, 0, s48",
                "  s_add_u32 s49, s49, 1"]
        for l in interleave(mfmas(1, u), upd + reads(0, vRW) + post, lead=4): e(l)
        e("  s_waitcnt lgkmcnt(0)")
    e(f"  s_cmp_lt_u32 s49, {NST}")
    e("  s_cbranch_scc1 L1_loop")
    stamp()
    e("  s_lshl_b32 s42, s18, 4")
    e("  s_lshl_b32 s43, s32, 2")
    e("  s_add_u32 s42, s42, s43")
    e(f"  s_mul_i32 s42, s42, {KB2}")
    e("  s_lshl_b32 s43, s19, 1")
    e("  s_add_u32 s42, s42, s43")
    e("  s_lshl_b32 s42, s42, 10")
    e("  v_lshlrev_b32 v20, 4, v1")
    import math, struct
    c0 = -2.0 * math.sqrt(2.0 / math.pi) * math.log2(math.e)
    c1 = c0 * 0.044715
    def f2u(x): return struct.unpack("<I", struct.pack("<f", x))[0]
    e(f"  v_mov_b32 v16, {f2u(c0):#x}")
    e(f"  v_mov_b32 v17, {f2u(c0):#x}")
    e(f"  v_mov_b32 v18, {f2u(c1):#x}")
    e(f"  v_mov_b32 v19, {f2u(c1):#x}")
    e("  s_nop 3")
    n = 0
    for a in range(4):
        for p in range(2):
            dst = 184 + (n & 3) * 4; n += 1
            pairs = [(2 * p + tt, q) for tt in range(2) for q in range(2)]
            T = [152 + 4 * i for i in range(4)]
            def G(i): t, q = pairs[i]; return acc(0, t, a) + 2 * q
            def U(i): t, q = pairs[i]; return acc(1, t, a) + 2 * q
            for i in range(4): e(f"  v_pk_mul_f32 v[{T[i]}:{T[i]+1}], v[{G(i)}:{G(i)+1}], v[{G(i)}:{G(i)+1}]")
            for i in range(4): e(f"  v_pk_fma_f32 v[{T[i]}:{T[i]+1}], v[{T[i]}:{T[i]+1}], v[18:19], v[16:17]")
            for i in range(4): e(f"  v_pk_mul_f32 v[{T[i]}:{T[i]+1}], v[{T[i]}:{T[i]+1}], v[{G(i)}:{G(i)+1}]")
            for i in range(4):
                e(f"  v_exp_f32 v{T[i]}, v{T[i]}")
                e(f"  v_exp_f32 v{T[i]+1}, v{T[i]+1}")
            for i in range(4): e(f"  v_pk_mul_f32 v[{T[i]+2}:{T[i]+3}], v[{G(i)}:{G(i)+1}], v[{U(i)}:{U(i)+1}]")
            for i in range(4): e(f"  v_pk_add_f32 v[{T[i]}:{T[i]+1}], v[{T[i]}:{T[i]+1}], 1.0 op_sel_hi:[1,0]")
            for i in range(4):
                e(f"  v_rcp_f32 v{T[i]}, v{T[i]}")
                e(f"  v_rcp_f32 v{T[i]+1}, v{T[i]+1}")
            e("  s_nop 0")
            for i in range(4): e(f"  v_pk_mul_f32 v[{T[i]}:{T[i]+1}], v[{T[i]}:{T[i]+1}], v[{T[i]+2}:{T[i]+3}]")
            for i in range(4): e(f"  v_cvt_pk_bf16_f32 v{dst + i}, v{T[i]}, v{T[i]+1}")
            e(f"  s_add_u32 s43, s42, {a * KB2 * 1024 + p * 1024}")
            e(f"  buffer_store_dwordx4 v[{dst}:{dst+3}], v20, s[28:31], s43 offen {STFLAG}")
    stamp()
    if INSTR: e("  s_waitcnt vmcnt(0)")
    stamp()
    stamp_flush(160, "L1_dbg")
    wg_times(160, "L1_wt", 0)
    e("  s_endpgm")

    e("L1_transposer:")
    e("  s_waitcnt lgkmcnt(0)")
    e("  s_mov_b32 s28, s12")
    e("  s_and_b32 s29, s13, 0xffff")
    e(f"  s_mov_b32 s30, {WS_USED}")
    e("  s_mov_b32 s31, 0x00020000")
    e("  s_lshl_b32 s18, s14, 2")
    e("  s_add_u32 s18, s18, s15")
    e("  s_sub_u32 s18, s18, 28")
    e("  s_lshl_b32 s19, s14, 3")
    e("  s_add_u32 s19, s19, s15")
    e("  s_sub_u32 s19, s19, 48")
    e("  s_cmp_lt_u32 s14, 6")
    e("  s_cselect_b32 s18, s18, s19")
    e("  s_mov_b32 s20, s10")
    e("  s_and_b32 s21, s11, 0xffff")
    e(f"  s_mov_b32 s22, {F * D * 2}")
    e("  s_mov_b32 s23, 0x00020000")
    e("  s_mul_i32 s33, s32, 160")
    e("  s_mov_b32 s34, 52429")
    for q in range(5):
        e(f"  v_add_u32 v20, {q * 64}, v1")
        e("  v_mul_lo_u32 v21, v20, s34")
        e("  v_lshrrev_b32 v21, 19, v21")
        e("  v_mul_u32_u24 v22, 10, v21")
        e("  v_sub_u32 v22, v20, v22")
        e("  v_mul_u32_u24 v21, 1280, v21")
        e("  v_lshlrev_b32 v22, 4, v22")
        e(f"  v_add3_u32 v{2 + q}, v21, v22, s33")
    e("  v_lshrrev_b32 v21, 2, v1")
    e("  v_mul_u32_u24 v21, 160, v21")
    e("  v_and_b32 v22, 3, v1")
    e("  v_lshlrev_b32 v22, 3, v22")
    e("  s_mul_i32 s35, s32, 10240")
    e("  v_add3_u32 v7, v21, v22, s35")
    e("  v_lshlrev_b32 v8, 4, v1")
    e("L1_tr_loop:")
    e("  s_mul_i32 s37, s18, 40960")
    for i in range(2):
        e(f"  s_add_u32 s36, s37, {i * 640}")
        for q in range(5):
            e(f"  s_add_u32 m0, s35, {i * 5120 + q * 1024}")
            e("  s_nop 0")
            e(f"  buffer_load_dwordx4 v{2 + q}, s[20:23], s36 offen lds")
    e("  s_waitcnt vmcnt(0)")
    for i in range(2):
        for t in range(5):
            for h in range(2):
                r = 24 + (i * 5 + t) * 4 + h * 2
                e(f"  ds_read_b64_tr_b16 v[{r}:{r+1}], v7 offset:{i * 5120 + h * 2560 + t * 32}")
    e(f"  s_mul_i32 s38, s32, {5 * KB2}")
    e("  s_add_u32 s38, s38, s18")
    e("  s_lshl_b32 s38, s38, 10")
    e("  s_waitcnt lgkmcnt(0)")
    for i in range(2):
        for t in range(5):
            r = 24 + (i * 5 + t) * 4
            e(f"  s_add_u32 s39, s38, {WDT_OFF + (i * 20 + t) * KB2 * 1024}")
            e(f"  buffer_store_dwordx4 v[{r}:{r+3}], v8, s[28:31], s39 offen {STFLAG}")
    e("  s_waitcnt vmcnt(0)")
    e("  s_add_u32 s18, s18, 40")
    e(f"  s_cmp_lt_u32 s18, {KB2}")
    e("  s_cbranch_scc1 L1_tr_loop")
    wg_times(80, "L1_wt2", 0)
    e("L1_end:")
    e("  s_endpgm")


def k2():
    DEPTH = 4
    NB = 14
    ACC = 16
    def acc(tn, a): return ACC + (a * 5 + tn) * 4
    RING = 96
    def hf(slot, a): return RING + slot * 36 + a * 4
    def wfr(slot, tn): return RING + slot * 36 + 16 + tn * 4

    e("standalone__geglu_ffn__prompt_k2_kernel:")
    e("  s_cmp_ge_u32 s2, 256")
    e("  s_cbranch_scc1 L2_end")
    stamp_reset()
    if INSTR: e("  s_memrealtime s[62:63]")
    stamp()
    e("  s_load_dwordx2 s[4:5], s[0:1], 32")
    e("  s_load_dwordx2 s[6:7], s[0:1], 48")
    e("  v_lshrrev_b32 v2, 6, v0")
    e("  v_and_b32 v1, 63, v0")
    e("  s_and_b32 s14, s2, 7")
    e("  s_lshr_b32 s15, s2, 3")
    e("  v_readfirstlane_b32 s32, v2")
    e("  s_and_b32 s16, s14, 1")
    e("  s_lshl_b32 s16, s16, 2")
    e("  s_and_b32 s17, s15, 3")
    e("  s_add_u32 s16, s16, s17")
    e("  s_lshr_b32 s17, s14, 1")
    e("  s_lshl_b32 s17, s17, 3")
    e("  s_lshr_b32 s18, s15, 2")
    e("  s_add_u32 s17, s17, s18")
    e("  s_mul_i32 s18, s32, 14")
    e("  s_cmp_eq_u32 s32, 3")
    e("  s_cselect_b32 s19, 1, 0")
    e("  s_sub_u32 s18, s18, s19")
    for a in range(4):
        e(f"  s_add_u32 s19, s32, {a}")
        e("  s_and_b32 s19, s19, 3")
        e("  s_lshl_b32 s20, s17, 2")
        e("  s_add_u32 s19, s19, s20")
        e(f"  s_mul_i32 s19, s19, {KB2}")
        e("  s_add_u32 s19, s19, s18")
        e(f"  s_lshl_b32 s{40 + a}, s19, 10")
    for tn in range(5):
        e("  s_mul_i32 s19, s16, 5")
        e(f"  s_add_u32 s19, s19, {tn}")
        e(f"  s_mul_i32 s19, s19, {KB2}")
        e("  s_add_u32 s19, s19, s18")
        e("  s_lshl_b32 s19, s19, 10")
        e(f"  s_add_u32 s{44 + tn}, s19, {WDT_OFF}")
    e("  v_lshlrev_b32 v3, 4, v1")
    e("  s_waitcnt lgkmcnt(0)")
    e("  s_mov_b32 s8, s6")
    e("  s_and_b32 s9, s7, 0xffff")
    e(f"  s_mov_b32 s10, {WS_USED}")
    e("  s_mov_b32 s11, 0x00020000")
    e("  s_mov_b32 s24, s4")
    e("  s_and_b32 s25, s5, 0xffff")
    e(f"  s_mov_b32 s26, {M * D * 2}")
    e("  s_mov_b32 s27, 0x00020000")

    def loads(b):
        slot = b % DEPTH
        L = []
        pre = []
        if b == NB - 1:
            pre.append("  s_cmp_lt_u32 s32, 2")
            pre.append("  s_cselect_b32 s50, s50, 0x40000000")
        for tn in range(5):
            r = wfr(slot, tn)
            L.append(f"  s_add_u32 s{52 + (tn & 1)}, s{44 + tn}, s50")
            L.append(f"  buffer_load_dwordx4 v[{r}:{r+3}], v3, s[8:11], s{52 + (tn & 1)} offen {LD2}")
        for a in range(4):
            r = hf(slot, a)
            L.append(f"  s_add_u32 s{52 + (a & 1)}, s{40 + a}, s50")
            L.append(f"  buffer_load_dwordx4 v[{r}:{r+3}], v3, s[8:11], s{52 + (a & 1)} offen {LD2}")
        post = ["  s_add_u32 s50, s50, 1024", "  s_cmp_eq_u32 s50, s51", "  s_cselect_b32 s50, 0, s50"]
        return pre, L, post

    e("  s_cmp_lt_u32 s32, 2")
    e("  s_cselect_b32 s51, 14, 13")
    e("  s_lshl_b32 s51, s51, 10")
    if ROT == 1:
        e("  s_and_b32 s50, s15, 3")
        e("  s_mul_i32 s50, s50, 3")
        e("  s_lshr_b32 s52, s15, 2")
        e("  s_mul_i32 s52, s52, 5")
        e("  s_add_u32 s50, s50, s52")
        for _ in range(3):
            e("  s_cmp_ge_u32 s50, 13")
            e("  s_cselect_b32 s52, 13, 0")
            e("  s_sub_u32 s50, s50, s52")
        e("  s_lshl_b32 s50, s50, 10")
    else:
        e("  s_mov_b32 s50, 0")
    for b in range(DEPTH):
        pre, L, post = loads(b)
        for l in pre + L + post: e(l)
    for i in range(80):
        e(f"  v_mov_b32 v{ACC + i}, 0")
    for a in range(1, 4):
        e(f"  s_add_u32 s19, s32, {a}")
        e("  s_and_b32 s19, s19, 3")
        e("  s_mul_i32 s19, s19, 15360")
        e(f"  s_add_u32 s19, s19, {(a - 1) * 5120}")
        e(f"  v_add_u32 v{3 + a}, s19, v3")
    e("  s_mul_i32 s19, s32, 15360")
    e("  v_add_u32 v7, s19, v3")

    for b in range(NB):
        slot = b % DEPTH
        nout = (min(b + DEPTH - 1, NB - 1) - b) * 9
        e(f"  s_waitcnt vmcnt({nout})")
        if b % 2 == 0: stamp()
        def mfa(a):
            L = []
            for tn in range(5):
                c = acc(tn, a); w = wfr(slot, tn); h = hf(slot, a)
                L.append(f"  v_mfma_f32_16x16x32_bf16 v[{c}:{c+3}], v[{w}:{w+3}], v[{h}:{h+3}], v[{c}:{c+3}]")
            return L
        def wr(a):
            return [f"  ds_write_b128 v{3 + a}, v[{acc(tn, a)}:{acc(tn, a)+3}] offset:{tn * 1024}" for tn in range(5)]
        if b < NB - 1:
            for a in range(4):
                for l in mfa(a): e(l)
        else:
            for l in mfa(1) + mfa(2): e(l)
            for l in interleave(mfa(3), wr(1)): e(l)
            for l in interleave(mfa(0), wr(2)): e(l)
            e("  s_nop 4")
            for l in wr(3): e(l)
        if b + DEPTH < NB:
            pre, L, post = loads(b + DEPTH)
            for l in pre + L + post: e(l)
        if b == 2:
            e("  v_and_b32 v8, 15, v1")
            e("  v_lshrrev_b32 v9, 4, v1")
            e("  s_lshl_b32 s19, s17, 6")
            e("  s_lshl_b32 s20, s32, 4")
            e("  s_add_u32 s19, s19, s20")
            e("  v_add_u32 v8, s19, v8")
            e("  v_mul_u32_u24 v8, 1280, v8")
            e("  s_mul_i32 s19, s16, 160")
            e("  v_add_u32 v8, s19, v8")
            e("  v_and_b32 v10, 1, v9")
            e("  v_lshlrev_b32 v10, 5, v10")
            e("  v_lshrrev_b32 v11, 1, v9")
            e("  v_lshl_add_u32 v10, v11, 4, v10")
            e("  v_add_u32 v10, v8, v10")
            e("  v_lshl_add_u32 v11, v9, 3, v8")
    stamp()
    e("  s_waitcnt lgkmcnt(0)")
    e("  s_barrier")
    for tn in range(5):
        for r in range(3):
            t = RING + (r * 5 + tn) * 4
            e(f"  ds_read_b128 v[{t}:{t+3}], v7 offset:{r * 5120 + tn * 1024}")
    for tn in range(5):
        c = acc(tn, 0)
        e(f"  s_waitcnt lgkmcnt({3 * (4 - tn)})")
        t0, t1, t2 = [RING + (r * 5 + tn) * 4 for r in range(3)]
        for i in (0, 2):
            e(f"  v_pk_add_f32 v[{c+i}:{c+i+1}], v[{c+i}:{c+i+1}], v[{t0+i}:{t0+i+1}]")
            e(f"  v_pk_add_f32 v[{t1+i}:{t1+i+1}], v[{t1+i}:{t1+i+1}], v[{t2+i}:{t2+i+1}]")
        for i in (0, 2):
            e(f"  v_pk_add_f32 v[{c+i}:{c+i+1}], v[{c+i}:{c+i+1}], v[{t1+i}:{t1+i+1}]")
    P = 200
    for tn in range(5):
        c = acc(tn, 0)
        e(f"  v_cvt_pk_bf16_f32 v{P + tn * 2}, v{c}, v{c + 1}")
        e(f"  v_cvt_pk_bf16_f32 v{P + tn * 2 + 1}, v{c + 2}, v{c + 3}")
    e("  s_nop 1")
    for p in range(2):
        r = P + p * 4
        e(f"  v_permlane16_swap_b32 v{r}, v{r + 2}")
        e(f"  v_permlane16_swap_b32 v{r + 1}, v{r + 3}")
    e("  s_nop 1")
    for p in range(2):
        r = P + p * 4
        e(f"  buffer_store_dwordx4 v[{r}:{r+3}], v10, s[24:27], 0 offen offset:{p * 64}")
    e(f"  buffer_store_dwordx2 v[{P + 8}:{P + 9}], v11, s[24:27], 0 offen offset:128")
    stamp()
    if INSTR: e("  s_waitcnt vmcnt(0)")
    stamp()
    stamp_flush(220, "L2_dbg")
    wg_times(220, "L2_wt", 1)
    e("L2_end:")
    e("  s_endpgm")


HEADER = """; Kernarg layout for this problem (56 bytes, ptrs only, base s[0:1]):
; @launch kernel=standalone__geglu_ffn__prompt_k1_kernel grid=(256,1,1) block=(512,1,1) lds=147456
; @launch kernel=standalone__geglu_ffn__prompt_k2_kernel grid=(256,1,1) block=(256,1,1) lds=61440
.amdgcn_target "amdgcn-amd-amdhsa--gfx950"
.text
"""

def kd(name, vgpr, sgpr=102, agpr=0):
    acc = (vgpr + 3) // 4 * 4
    if agpr: vgpr = acc + agpr
    return f""".amdhsa_kernel {name}
  .amdhsa_next_free_vgpr {vgpr}
  .amdhsa_next_free_sgpr {sgpr}
  .amdhsa_accum_offset {acc}
  .amdhsa_group_segment_fixed_size 0
  .amdhsa_kernarg_size 56
  .amdhsa_user_sgpr_count 2
  .amdhsa_user_sgpr_kernarg_segment_ptr 1
  .amdhsa_system_sgpr_workgroup_id_x 1
  .amdhsa_float_denorm_mode_32 3
.end_amdhsa_kernel
"""

def main():
    hdr = HEADER.rstrip("\n").replace("block=(512,1,1)", "block=(576,1,1)" if PW else "block=(512,1,1)")
    if V6 and not V4: hdr = hdr.replace("lds=147456", "lds=163840")
    if V4: hdr = hdr.replace("block=(512,1,1) lds=147456", "block=(256,1,1) lds=98304")
    e(hdr)
    for name, fn in (("standalone__geglu_ffn__prompt_k1_kernel", k1v4 if V4 else (k1v6 if V6 else k1)), ("standalone__geglu_ffn__prompt_k2_kernel", k2)):
        e(f".globl {name}")
        e(".p2align 8")
        e(f".type {name},@function")
        fn()
    e('.section .rodata,"a"')
    e(".p2align 6")
    e(kd("standalone__geglu_ffn__prompt_k1_kernel", 216, agpr=160) if V4 else kd("standalone__geglu_ffn__prompt_k1_kernel", 200 if V6 else 168))
    e(".p2align 6")
    e(kd("standalone__geglu_ffn__prompt_k2_kernel", 240))
    path = sys.argv[1] if len(sys.argv) > 1 else "standalone__geglu_ffn__prompt.s"
    open(path, "w").write("\n".join(out) + "\n")

main()
```
